```python
import torch

def _softmax(x, axis=-1):
    return torch.softmax(x, dim=axis)
def _gelu(x):
    return torch.nn.functional.gelu(x, approximate="tanh")
def _silu(x):
    return torch.nn.functional.silu(x)
def _sigmoid(x):
    return torch.sigmoid(x)
def _layernorm(x, axis=-1, eps=1e-5):
    m = x.mean(dim=axis, keepdim=True)
    v = x.var(dim=axis, keepdim=True, unbiased=False)
    return (x - m) / torch.sqrt(v + eps)
def _scatter_add(tgt, idx, src, axis=0):
    return tgt.clone().index_add_(axis, idx, src)
def _segment_sum(src, seg, n):
    out = torch.zeros((n,) + src.shape[1:], dtype=src.dtype)
    return out.index_add_(0, seg, src)
def _pad(x, pw):
    flat = tuple(v for pair in reversed(pw) for v in pair)
    return torch.nn.functional.pad(x, flat)

kernel_name = 'sequential_preLN__linear_attn_block__moe_arch_mod__prompt'

def setup_inputs():

    _w = (lambda a: (lambda t: t.to(torch.bfloat16) if t.is_floating_point() else t)(torch.as_tensor(a)))
    def _A_setup():
        B, S, D = 1, 2048, 1024
        return {
            "x": _w((lambda *s: torch.randn(*s, dtype=torch.bfloat16) * 0.05)(B, S, D)),
            "wqkv": _w((lambda *s: torch.randn(*s, dtype=torch.bfloat16) * 0.05)(D, 3 * D)),
            "wo": _w((lambda *s: torch.randn(*s, dtype=torch.bfloat16) * 0.05)(D, D)),
        }
    _A_in = _A_setup()

    def _B_setup():
        B, S, D, F, C = 1, 2048, 1024, 3584, 2
        return {
            "x": _w((lambda *s: torch.randn(*s, dtype=torch.bfloat16) * 0.05)(B, S, D)),
            "w_r": _w((lambda *s: torch.randn(*s, dtype=torch.bfloat16) * 0.05)(D)),
            "w_gate": _w((lambda *s: torch.randn(*s, dtype=torch.bfloat16) * 0.05)(D, F)),
            "w_up": _w((lambda *s: torch.randn(*s, dtype=torch.bfloat16) * 0.05)(D, F)),
            "w_down": _w((lambda *s: torch.randn(*s, dtype=torch.bfloat16) * 0.05)(F, D)),
        }
    _B_in = _B_setup()

    return {
        "A_x": _A_in["x"],
        "A_wqkv": _A_in["wqkv"],
        "A_wo": _A_in["wo"],
        "B_x": _B_in["x"],
        "B_w_r": _B_in["w_r"],
        "B_w_gate": _B_in["w_gate"],
        "B_w_up": _B_in["w_up"],
        "B_w_down": _B_in["w_down"],
    }

def reference(A_x, A_wqkv, A_wo, B_x, B_w_r, B_w_gate, B_w_up, B_w_down):
    def _A_ref(x, wqkv, wo):
        B, S, D = x.shape
        H = 32; Dh = D // H
        qkv = (lambda x, *d: x.permute(*d))((x @ wqkv).reshape(B, S, 3, H, Dh), 2, 0, 3, 1, 4)
        q, k, v = qkv[0], qkv[1], qkv[2]
        phi = lambda t: torch.where(t > 0, t + 1, torch.exp(t)) + 1e-6
        pq, pk = phi(q), phi(k)
        kv = torch.einsum("bhsd,bhse->bhde", pk, v)
        z = torch.einsum("bhsd->bhd", pk)
        num = torch.einsum("bhqd,bhde->bhqe", pq, kv)
        den = torch.einsum("bhqd,bhd->bhq", pq, z)[..., None] + 1e-6
        o = num / den
        return (lambda x, *d: x.permute(*d))(o, 0, 2, 1, 3).reshape(B, S, D) @ wo

    def _B_ref(x, w_r, w_gate, w_up, w_down):
        B, S, D = x.shape
        C = 2
        r = x @ w_r
        idx = torch.argsort(-r, axis=-1)[:, :C]
        idx_e = (lambda x, n, axis: torch.repeat_interleave(x, n, dim=axis))(idx.reshape(B, C, 1), D, axis=2)
        x_sel = (lambda x, i, axis: torch.take_along_dim(x, i, dim=axis))(x, idx_e, axis=1)
        g = _silu(x_sel @ w_gate)
        u = x_sel @ w_up
        y = (g * u) @ w_down
        r_sel = _sigmoid((lambda x, i, axis: torch.take_along_dim(x, i, dim=axis))(r, idx, axis=1))
        y = y * r_sel.reshape(B, C, 1)
        b_off = (torch.arange(B) * S).reshape(B, 1)
        flat_idx = (idx + b_off).reshape(B * C)
        zero = (x * 0.0).reshape(B * S, D)
        upd = _scatter_add(zero, flat_idx, y.reshape(B * C, D), axis=0)
        return x + upd.reshape(B, S, D)

    x = A_x
    h = x + _A_ref(_layernorm(x, axis=-1), A_wqkv, A_wo)
    h2 = h + _B_ref(_layernorm(h, axis=-1), B_w_r, B_w_gate, B_w_up, B_w_down)
    return h2
```

```python
NAME = "sequential_preLN__linear_attn_block__moe_arch_mod__prompt"

HEADER = """; Kernarg layout for this problem (88 bytes, ptrs only, base s[0:1]):
"""


class Asm:
    def __init__(self):
        self.lines = []
        self.uid = 0

    def __call__(self, s):
        for ln in s.split("\n"):
            ln = ln.strip()
            if not ln:
                continue
            if ln.endswith(":") or ln.startswith("."):
                self.lines.append(ln)
            else:
                self.lines.append("    " + ln)

    def c(self, s):
        self.lines.append("    ; " + s)

    def label(self, base="L"):
        self.uid += 1
        return f"{base}_{self.uid}"

    def text(self):
        return "\n".join(self.lines) + "\n"


def kernel_begin(a, label):
    a(f".globl {label}")
    a(".p2align 8")
    a(f".type {label},@function")
    a(f"{label}:")


def kd(label, vgpr=256, sgpr=102, accum=None, extra=""):
    if accum is None:
        accum = min(256, (vgpr + 3) // 4 * 4)
    return f""".p2align 6
.amdhsa_kernel {label}
  .amdhsa_next_free_vgpr {vgpr}
  .amdhsa_next_free_sgpr {sgpr}
  .amdhsa_accum_offset {accum}
  .amdhsa_group_segment_fixed_size 0
  .amdhsa_kernarg_size 88
  .amdhsa_user_sgpr_count 2
  .amdhsa_user_sgpr_kernarg_segment_ptr 1
  .amdhsa_system_sgpr_workgroup_id_x 1
{extra}.end_amdhsa_kernel
"""


def wrap(launch_lines, body, kds):
    s = HEADER
    for l in launch_lines:
        s += "; @launch " + l + "\n"
    s += '.amdgcn_target "amdgcn-amd-amdhsa--gfx950"\n.text\n'
    s += body
    s += '.section .rodata,"a"\n'
    s += "".join(kds)
    return s


def srd(a, d, base, nbytes):
    a(f"s_mov_b32 s{d}, s{base}")
    a(f"s_and_b32 s{d+1}, s{base+1}, 0xffff")
    a(f"s_mov_b32 s{d+2}, {nbytes}")
    a(f"s_mov_b32 s{d+3}, 0x20000")


def vr(b, n=1):
    return f"v{b}" if n == 1 else f"v[{b}:{b+n-1}]"


def sr(b, n=1):
    return f"s{b}" if n == 1 else f"s[{b}:{b+n-1}]"
```

```python
import re

REG = re.compile(r"\b([vsa])(?:(\d+)|\[(\d+):(\d+)\])(?![\w\[])")
TRANS = ("v_exp_", "v_log_", "v_rcp_", "v_rsq_", "v_sqrt_", "v_sin_", "v_cos_")


def regs(tok):
    out = set()
    for m in REG.finditer(tok):
        k = m.group(1)
        if m.group(2) is not None:
            out.add((k, int(m.group(2))))
        else:
            out.update((k, i) for i in range(int(m.group(3)), int(m.group(4)) + 1))
    for name in ("vcc", "exec", "m0"):
        if re.search(r"\b%s(_lo|_hi)?\b" % name, tok):
            out.add((name, 0))
    return out


def split_ops(s):
    ops, depth, cur = [], 0, ""
    for ch in s:
        if ch == "[":
            depth += 1
        if ch == "]":
            depth -= 1
        if ch == "," and depth == 0:
            ops.append(cur.strip())
            cur = ""
        else:
            cur += ch
    if cur.strip():
        ops.append(cur.strip())
    return ops


class I:
    def __init__(self, line):
        self.line = line
        t = line.split(";")[0].strip()
        self.is_label = t.endswith(":")
        self.is_dir = t.startswith(".")
        self.empty = (t == "") or self.is_label or self.is_dir
        self.w, self.r = set(), set()
        self.mn = ""
        self.states = 0
        if self.empty:
            return
        p = t.split(None, 1)
        mn = self.mn = p[0]
        ops = split_ops(p[1]) if len(p) > 1 else []
        self.ops = ops
        self.states = 1
        if mn == "s_nop":
            self.states = int(ops[0], 0) + 1
        self.mfma = mn.startswith("v_mfma")
        self.valu = mn.startswith("v_") and not self.mfma
        self.trans = mn.startswith(TRANS)
        self.dot = mn.startswith("v_dot")
        self.vmem = mn.startswith(("buffer_", "global_"))
        self.ds = mn.startswith("ds_")
        self.salu = mn.startswith("s_")
        self.dpp = "dpp" in mn or any(k in t for k in (" row_", "quad_perm", "wave_", "row_bcast", "row_mirror"))
        self.perm = mn.startswith("v_permlane")
        self.rdlane = mn.startswith(("v_readlane", "v_readfirstlane"))
        self.wrlane = mn.startswith("v_writelane")
        self.ldsdma = self.vmem and re.search(r"\blds\b", t) is not None or mn.startswith("global_load_lds")
        self.srcC = set()
        self.wide_store = False
        R = [regs(o.split(" ")[0]) if i == len(ops) - 1 and not self.mfma else regs(o) for i, o in enumerate(ops)]
        R = [regs(o) for o in ops]
        if self.mfma:
            self.w = R[0]
            self.r = R[1] | R[2] | R[3]
            self.srcC = R[3]
            self.srcAB = R[1] | R[2]
            self.passes = 8 if "32x32x16" in mn else 4
        elif self.valu:
            if self.perm and "swap" in mn:
                self.w = R[0] | R[1]
                self.r = R[0] | R[1]
            else:
                self.w = set(R[0])
                rest = R[1:]
                if mn.startswith(("v_add_co", "v_sub_co", "v_addc_co", "v_subb_co", "v_div_scale", "v_mad_u64")):
                    self.w |= R[1]
                    rest = R[2:]
                for x in rest:
                    self.r |= x
                if mn.startswith(("v_fmac", "v_dot2c", "v_writelane", "v_pk_fmac")) or self.dpp:
                    self.r |= R[0]
                if mn.startswith("v_cndmask") and len(ops) == 3:
                    self.r.add(("vcc", 0))
                if mn.startswith("v_cmpx"):
                    self.w.add(("exec", 0))
        elif self.vmem:
            store = "store" in mn
            atomic = "atomic" in mn
            allr = set().union(*R) if R else set()
            if mn.startswith(("buffer_wbl2", "buffer_inv")):
                pass
            elif self.ldsdma:
                self.r = allr | {("m0", 0)}
            elif store:
                self.r = allr
                self.wide_store = mn.endswith(("x3", "x4"))
                self.data = R[0] if mn.startswith("buffer") else R[1]
            elif atomic:
                self.r = allr
                if "sc0" in t:
                    self.w = R[0]
            else:
                self.w = R[0]
                self.r = set().union(*R[1:])
        elif self.ds:
            if mn.startswith(("ds_read", "ds_bpermute", "ds_permute", "ds_swizzle")) or "rtn" in mn:
                self.w = R[0]
                self.r = set().union(*R[1:]) if len(R) > 1 else set()
            else:
                self.r = set().union(*R) if R else set()
        elif self.salu:
            if mn.startswith(("s_cmp", "s_cbranch", "s_branch", "s_waitcnt", "s_barrier", "s_nop", "s_sleep",
                              "s_setprio", "s_endpgm", "s_bitcmp")):
                self.r = set().union(*R) if R else set()
            else:
                self.w = set(R[0]) if R else set()
                self.r = set().union(*R[1:]) if len(R) > 1 else set()
                if "saveexec" in mn:
                    self.w.add(("exec", 0))


def vg(s):
    return {x for x in s if x[0] in "va"}


def sg(s):
    return {x for x in s if x[0] == "s" or x[0] == "vcc"}


def need(p, c):
    n = 0
    if p.mfma:
        big = p.passes == 8
        if c.mfma:
            if p.w & c.srcAB:
                n = max(n, 12 if big else 8)
            if p.w & c.srcC and not (p.w == c.srcC and p.passes == c.passes):
                n = max(n, 10 if big else 6)
        elif (c.valu or c.vmem or c.ds) and p.w & (vg(c.r) | vg(c.w)):
            n = max(n, 12 if big else 8)
        if c.valu and p.srcC & vg(c.w):
            n = max(n, 7 if big else 3)
    if p.valu:
        pv, ps = vg(p.w), sg(p.w)
        if c.mfma and pv & c.r:
            n = max(n, 3 if p.dot else 2)
        if c.valu:
            if pv & vg(c.r):
                if c.dpp or c.perm:
                    n = max(n, 2)
                if c.rdlane:
                    n = max(n, 1)
                if p.trans and not c.trans:
                    n = max(n, 1)
                if p.trans and c.trans:
                    n = max(n, 1)
            if p.dot and pv & (vg(c.r) | vg(c.w)):
                if not (c.mn == p.mn and not (pv & (regs(c.ops[1]) | regs(c.ops[2])))):
                    n = max(n, 3)
            if ps & sg(c.r):
                n = max(n, 4 if (c.rdlane or c.wrlane) else 2)
            if ("exec", 0) in p.w:
                n = max(n, 5)
        if p.dot and (c.vmem or c.ds) and pv & vg(c.r):
            n = max(n, 3)
        if p.trans and (c.vmem or c.ds) and pv & vg(c.r):
            n = max(n, 1)
        if c.vmem and ps & sg(c.r):
            n = max(n, 5)
        if c.salu and ps & sg(c.r):
            n = max(n, 1)
    if p.salu and ("m0", 0) in p.w and c.ldsdma:
        n = max(n, 1)
    if p.vmem and p.wide_store and p.data & vg(c.w):
        n = max(n, 2 if (c.valu or c.mfma) else 1)
    return n


WINDOW = 14


def _required(hist, c):
    dist, req = 0, 0
    for p in reversed(hist):
        k = need(p, c)
        if k > dist:
            req = max(req, k - dist)
        dist += p.states
        if dist >= WINDOW:
            break
    return req


def process(lines):
    out, hist, added = [], [], 0
    for ln in lines:
        c = I(ln)
        if c.empty:
            out.append(ln)
            continue
        req = _required(hist, c)
        if req:
            nop = I(f"    s_nop {req-1}")
            out.append(nop.line)
            hist.append(nop)
            added += 1
        out.append(ln)
        hist.append(c)
        if c.mn in ("s_branch", "s_endpgm"):
            hist = []
    return out, added


def check_edges(lines):
    ins = [I(l) for l in lines]
    labels = {i.line.strip()[:-1]: k for k, i in enumerate(ins) if i.is_label}
    bad = []
    for k, b in enumerate(ins):
        if b.empty or not b.mn.startswith(("s_cbranch", "s_branch")):
            continue
        tgt = labels[b.ops[0]]
        hist = [x for x in ins[max(0, k - 40):k + 1] if not x.empty]
        dist = 0
        for c in ins[tgt:tgt + 40]:
            if c.empty:
                continue
            if _required(hist, c):
                bad.append((b.line.strip(), c.line.strip()))
            hist.append(c)
            dist += c.states
            if dist >= WINDOW or c.mn in ("s_branch", "s_endpgm"):
                break
    return bad
```

```python
import sys
sys.path.insert(0, "tools")
from asmlib import *
import hazard

STAGE = 40960
BOFF = 16384
NBUF = 4
L_MISC = 0
L_NM, L_RS, L_RSL, L_C = L_MISC, L_MISC + 512, L_MISC + 1024, L_MISC + 1536
L_WO = 8192
L_XCH = 139264
L_XKV = L_XCH
L_KVF = L_XCH + 12288
L_KEYS = 65536
L_SEG = 69632
L_RED1 = 90112
L_RED2 = 94208
L_STASH = 98304
L_AD = 100352
LDS_BYTES = 163840


def l_wo(h):
    return L_WO + 4096 * h


WS_STAT = 0
WS_CS = 0x10000
WS_ARENA = 0x100000
WS_O = 0x100000
WS_KV = 0x500000
WS_S2 = 0x600000
WS_DP = 0x680000
WS_GU = 0x6C0000
WS_Z = 0x6F8000
WS_CAND = 0x708000
WS_KEY = 0x718000
WS_DBG = 0x800000
WS_EPOCH = 0x80000
OOB = 0x80000000
SPIN = 1 << 16

X, WQ, WS, WO, OUT, DBG, GU, DN, WR = (f"s[{b}:{b+3}]" for b in (8, 12, 16, 20, 24, 28, 32, 36, 40))
CLR = WQ
sW, sXCD, sIDX, sRB, sHP, sLW, sTH, sHH, sRBB, sCB = "s3", "s44", "s45", "s46", "s47", "s48", "s49", "s50", "s51", "s52"
sEPS = "s54"
sSPIN = "s56"
sW1 = "s57"
sK1, sK2, sG1, sG2 = "s58", "s59", "s60", "s61"
sT0, sT1, sT2, sT3, sT4, sT5 = "s86", "s87", "s88", "s89", "s90", "s91"
s4K, s8K, s12K = "s92", "s93", "s94"
sONES = "s95"
sCAND = "s[96:97]"
sM1, sM2, sM3 = "s[4:5]", "s[6:7]", "s[98:99]"
sTAG = "s61"
VST = 15

DPPM = "row_mask:0xf bank_mask:0xf"


class Gen:
    def __init__(self, stamps=False, **opt):
        self.a = Asm()
        self.stamps = stamps
        self.opt = opt
        self.vm = []

    def nt(self, bit):
        return " nt" if self.opt.get("nt", 0) & bit else ""

    def vwait(self, *tags):
        last = max(i for i, t in enumerate(self.vm) if t in tags)
        n = len(self.vm) - 1 - last
        assert n < 64
        self.a(f"s_waitcnt vmcnt({n})")

    DBGMAP = [0, 1, 2, 3, 4, 5, 6, 7, 10, 11, 13, 16, 18, 20]

    def stamp(self, i):
        if not self.stamps:
            return
        a = self.a
        if self.stamps >= 2 and i not in self.DBGMAP:
            return
        a("s_memrealtime s[100:101]")
        a("s_waitcnt lgkmcnt(0)")
        if self.stamps >= 2:
            if i == 0:
                a("s_not_b32 s101, s100")
                a(f"v_writelane_b32 v{VST}, s101, 1")
            if self.stamps == 3:
                a("s_not_b32 s100, s100")
            a(f"v_writelane_b32 v{VST}, s100, {2 + self.DBGMAP.index(i)}")
        else:
            a(f"v_writelane_b32 v{VST}, s100, {i}")

    def stamp_out(self):
        if not self.stamps:
            return
        a = self.a
        if self.stamps >= 2:
            a(f"s_cmp_lg_u32 {sW}, {self.opt.get('dbgw', 4)}")
            a("s_cbranch_scc1 L_end")
            a("v_mbcnt_lo_u32_b32 v14, -1, 0")
            a("v_mbcnt_hi_u32_b32 v14, -1, v14")
            a("v_cmp_gt_u32 vcc, 16, v14")
            a("v_lshlrev_b32 v14, 2, v14")
            a(f"v_mov_b32 v13, {OOB}")
            a("v_cndmask_b32 v14, v13, v14, vcc")
            a(f"buffer_atomic_umax v{VST}, v14, {DBG}, 0 offen sc1")
            return
        a(f"s_lshl_b32 {sT0}, s2, 3")
        a(f"s_add_u32 {sT0}, {sT0}, {sW}")
        a(f"s_lshl_b32 {sT0}, {sT0}, 8")
        a(f"s_add_u32 {sT0}, {sT0}, {WS_DBG}")
        a("v_mbcnt_lo_u32_b32 v14, -1, 0")
        a("v_mbcnt_hi_u32_b32 v14, -1, v14")
        a(f"v_lshl_add_u32 v14, v14, 2, {sT0}")
        a(f"buffer_store_dword v{VST}, v14, {WS}, 0 offen")

    def rbf(self, d, s):
        self.a(f"v_cvt_pk_bf16_f32 v{d}, v{s}, v{s}")
        self.a(f"v_lshlrev_b32 v{d}, 16, v{d}")

    def sum_rows(self, regs, tmp):
        a = self.a
        for sw in ("v_permlane32_swap_b32", "v_permlane16_swap_b32"):
            for k, r in enumerate(regs):
                a(f"v_mov_b32 v{tmp+k}, v{r}")
            for k, r in enumerate(regs):
                a(f"{sw} v{r}, v{tmp+k}")
            for k, r in enumerate(regs):
                a(f"v_add_f32 v{r}, v{r}, v{tmp+k}")

    def spin_check(self, loop):
        a = self.a
        done = a.label("L_ok")
        a(f"s_cbranch_vccz {done}")
        a(f"s_sub_u32 {sSPIN}, {sSPIN}, 1")
        a(f"s_cbranch_scc0 {loop}")
        a(f"s_mov_b32 {sSPIN}, 0")
        a(f"{done}:")

    def top2(self, m1, m2, t1, t2, rows, o1, o2):
        a = self.a
        for sh in (8, 4, 2, 1):
            a(f"v_mov_b32_dpp v{t1}, v{m1} row_ror:{sh} {DPPM}")
            a(f"v_max_u32_dpp v{t2}, v{m2}, v{m2} row_ror:{sh} {DPPM}")
            a(f"v_med3_u32 v{m2}, v{m1}, v{t1}, v{t2}")
            a(f"v_max_u32 v{m1}, v{m1}, v{t1}")
        a(f"v_readlane_b32 {o1}, v{m1}, 0")
        a(f"v_readlane_b32 {o2}, v{m2}, 0")
        for r in range(1, rows):
            a(f"v_readlane_b32 {sT0}, v{m1}, {16*r}")
            a(f"v_readlane_b32 {sT1}, v{m2}, {16*r}")
            a(f"s_max_u32 {o2}, {o2}, {sT1}")
            a(f"s_min_u32 {sT1}, {o1}, {sT0}")
            a(f"s_max_u32 {o1}, {o1}, {sT0}")
            a(f"s_max_u32 {o2}, {o2}, {sT1}")

    def prologue(self):
        a = self.a
        kernel_begin(a, NAME + "_kernel")
        a("s_cmp_ge_u32 s2, 256")
        a("s_cbranch_scc1 L_end")
        a("s_load_dwordx16 s[64:79], s[0:1], 0")
        a("s_load_dwordx4 s[80:83], s[0:1], 64")
        a("s_load_dwordx2 s[84:85], s[0:1], 80")
        a("v_lshrrev_b32 v1, 6, v0")
        a("v_and_b32 v0, 63, v0")
        a(f"v_readfirstlane_b32 {sW}, v1")
        if self.stamps:
            a(f"v_mov_b32 v{VST}, 0")
        a(f"s_and_b32 {sXCD}, s2, 7")
        a(f"s_lshr_b32 {sIDX}, s2, 3")
        a(f"s_and_b32 {sRB}, {sXCD}, 1")
        a(f"s_lshl_b32 {sRB}, {sRB}, 3")
        a(f"s_and_b32 {sT0}, {sIDX}, 7")
        a(f"s_add_u32 {sRB}, {sRB}, {sT0}")
        a(f"s_lshr_b32 {sHP}, {sXCD}, 1")
        a(f"s_lshl_b32 {sHP}, {sHP}, 2")
        a(f"s_lshr_b32 {sT0}, {sIDX}, 3")
        a(f"s_add_u32 {sHP}, {sHP}, {sT0}")
        a(f"s_lshl_b32 {sRBB}, {sXCD}, 1")
        a(f"s_lshr_b32 {sT0}, {sIDX}, 4")
        a(f"s_add_u32 {sRBB}, {sRBB}, {sT0}")
        a(f"s_and_b32 {sCB}, {sIDX}, 15")
        a(f"s_and_b32 {sLW}, {sW}, 3")
        a(f"s_and_b32 {sTH}, {sW}, 1")
        a(f"s_bfe_u32 {sHH}, {sW}, 0x10001")
        a(f"s_mov_b32 {sSPIN}, {SPIN}")
        a(f"s_mov_b32 {sONES}, 0x3f803f80")
        a(f"s_movk_i32 {s4K}, 0x1000")
        a(f"s_movk_i32 {s8K}, 0x2000")
        a(f"s_movk_i32 {s12K}, 0x3000")
        a(f"s_cmp_lt_u32 {sW}, 4")
        a("s_cbranch_scc1 L_comp")

    def srds(self, first):
        a = self.a
        tab = {"X": (8, 64, 2048 * 2048), "WQ": (12, 66, 1024 * 6144), "WS": (16, 84, 0x10000000),
               "WO": (20, 68, 1024 * 2048), "OUT": (24, 80, 2048 * 2048), "DBG": (28, 82, 256),
               "DN": (36, 78, 3584 * 2048), "WR": (40, 72, 2048)}
        for k in first:
            if k == "GU":
                a("s_bitcmp1_b32 s2, 0")
                a("s_cselect_b32 s32, s76, s74")
                a("s_cselect_b32 s33, s77, s75")
                a("s_and_b32 s33, s33, 0xffff")
                a(f"s_mov_b32 s34, {1024*7168}")
                a("s_mov_b32 s35, 0x20000")
            else:
                srd(a, *tab[k])

    def stage_dma(self, t):
        a = self.a
        buf = t % NBUF
        self.vm += [f"S{t}"] * 10
        a(f"s_add_u32 m0, s53, {buf*STAGE}")
        a(f"s_add_u32 {sT4}, s63, {t*128}")
        for p in range(4):
            a(f"buffer_load_dwordx4 v{2+p}, {X}, {sT4} offen offset:{p*1024}{self.nt(1)} lds")
        a(f"s_mov_b32 {sT5}, {t*64*6144}")
        for m in range(3):
            a(f"s_add_u32 m0, s62, {buf*STAGE + m*8192}")
            for pp in range(2):
                a(f"buffer_load_dwordx4 v{6+m*2+pp}, {WQ}, {sT5} offen offset:{pp*1024}{self.nt(2)} lds")

    def wo_dma(self, heads):
        a = self.a
        for h in heads:
            self.vm.append("WO")
            a(f"s_add_u32 m0, {sT3}, {l_wo(h)}")
            a(f"s_mov_b32 {sT4}, {h*65536}")
            a(f"buffer_load_dwordx4 v12, {WO}, {sT4} offen{self.nt(4)} lds")

    def moe_ld(self, n):
        for _ in range(n):
            if self.moe:
                d, v, srd_, off = self.moe.pop(0)
                mx = self.opt.get("moex", 0)
                if mx == 1:
                    self.a(f"v_mov_b32 v27, {OOB}")
                    v = 27
                if mx == 2:
                    v, srd_, off = 29, X, 0
                self.a(f"s_mov_b32 {sT4}, {off}")
                self.a(f"buffer_load_dwordx4 v[{d}:{d+3}], v{v}, {srd_}, {sT4} offen" + {3: " nt", 4: " sc1", 5: " sc0 sc1 nt"}.get(mx, ""))
                self.vm.append("MOE")

    def loader(self):
        a = self.a
        a("v_lshrrev_b32 v20, 3, v0")
        a("v_and_b32 v21, 7, v0")
        a("v_lshrrev_b32 v22, 4, v0")
        a("v_xor_b32 v23, v21, v22")
        a("v_xor_b32 v24, 4, v23")
        a(f"s_lshl_b32 {sT0}, {sLW}, 5")
        a(f"v_add_u32 v25, {sT0}, v20")
        a("v_lshlrev_b32 v25, 11, v25")
        for p in range(4):
            a(f"v_lshl_add_u32 v{2+p}, v{23 + (p & 1)}, 4, v25")
            if p:
                a(f"v_add_u32 v{2+p}, {p*16384 - p*1024}, v{2+p}")
        a(f"s_lshl_b32 {sT0}, {sLW}, 4")
        a(f"v_add_u32 v25, {sT0}, v20")
        a("v_mul_u32_u24 v25, 6144, v25")
        a(f"s_lshl_b32 {sT0}, {sHP}, 7")
        a(f"v_add_u32 v25, {sT0}, v25")
        a("v_bfe_u32 v26, v0, 4, 1")
        a("v_lshlrev_b32 v26, 1, v26")
        a("v_xor_b32 v26, v26, v21")
        a("v_xor_b32 v27, 4, v26")
        for m in range(3):
            for pp in range(2):
                d = 6 + m * 2 + pp
                a(f"v_lshl_add_u32 v{d}, v{26+pp}, 4, v25")
                if m or pp:
                    a(f"v_add_u32 v{d}, {m*2048 + pp*8*6144 - pp*1024}, v{d}")
        a(f"s_lshl_b32 s63, {sRB}, 18")
        a(f"s_lshl_b32 s53, {sLW}, 12")
        a(f"s_lshl_b32 s62, {sLW}, 11")
        a(f"s_add_u32 s62, s62, {BOFF}")
        a("s_waitcnt lgkmcnt(0)")
        self.srds(["X", "WQ"])
        self.stamp(0)
        a(f"s_load_dword {sTAG}, s[84:85], {WS_EPOCH}")
        for t in range(3):
            self.stage_dma(t)
        self.srds(["WS", "WO", "OUT", "DBG", "GU", "DN", "WR"])
        a("v_lshrrev_b32 v22, 4, v0")
        a("v_and_b32 v23, 15, v0")
        a(f"s_lshl_b32 {sT0}, {sRB}, 6")
        a(f"v_add_u32 v28, {sT0}, v20")
        a("v_mul_u32_u24 v28, 6144, v28")
        a(f"s_lshl_b32 {sT0}, {sLW}, 11")
        a(f"s_lshl_b32 {sT1}, {sHP}, 7")
        a(f"s_add_u32 {sT0}, {sT0}, {sT1}")
        a(f"s_cmp_eq_u32 {sLW}, 3")
        a(f"s_cselect_b32 {sT0}, {OOB}, {sT0}")
        a(f"v_lshl_add_u32 v26, v21, 4, {sT0}")
        a("v_add_u32 v28, v28, v26")
        a(f"s_lshl_b32 {sT0}, {sRB}, 7")
        a(f"s_lshl_b32 {sT1}, {sHP}, 3")
        a(f"s_add_u32 {sT0}, {sT0}, {sT1}")
        a(f"s_lshl_b32 {sT1}, {sLW}, 1")
        a(f"s_add_u32 {sT0}, {sT0}, {sT1}")
        a("v_lshrrev_b32 v25, 5, v0")
        a(f"v_add_u32 v25, {sT0}, v25")
        a("v_lshlrev_b32 v13, 3, v25")
        a("v_and_b32 v26, 31, v0")
        a("v_cmp_eq_u32 vcc, 0, v26")
        a(f"v_mov_b32 v24, {OOB}")
        a("v_cndmask_b32 v13, v24, v13, vcc")
        a("v_lshlrev_b32 v25, 11, v25")
        a("v_lshl_add_u32 v29, v26, 4, v25")
        a(f"s_bfe_u32 {sT0}, s2, 0x20001")
        a(f"s_lshl_b32 {sT0}, {sT0}, 2")
        a(f"s_add_u32 {sT0}, {sT0}, {sLW}")
        a(f"s_lshl_b32 {sT0}, {sT0}, 6")
        a(f"v_lshl_add_u32 v30, v22, 4, {sT0}")
        a("v_mul_u32_u24 v30, 7168, v30")
        a(f"s_lshl_b32 {sT0}, {sIDX}, 8")
        a("s_cmp_ge_u32 s2, 224")
        a(f"s_cselect_b32 {sT0}, {OOB}, {sT0}")
        a(f"v_lshl_add_u32 v24, v23, 4, {sT0}")
        a("v_add_u32 v30, v30, v24")
        a(f"s_mul_i32 {sT0}, {sIDX}, 112")
        a(f"s_mul_i32 {sT1}, {sLW}, 28")
        a(f"s_add_u32 {sT0}, {sT0}, {sT1}")
        a("v_mul_u32_u24 v31, 7, v22")
        a(f"v_add_u32 v31, {sT0}, v31")
        a("v_lshlrev_b32 v31, 11, v31")
        a(f"s_lshl_b32 {sT0}, {sXCD}, 8")
        a(f"v_lshl_add_u32 v24, v23, 4, {sT0}")
        a("v_add_u32 v31, v31, v24")
        a("v_lshlrev_b32 v24, 1, v22")
        a("v_xor_b32 v24, v24, v21")
        a(f"s_lshl_b32 {sT0}, {sLW}, 3")
        a(f"v_add_u32 v12, {sT0}, v20")
        a("v_lshlrev_b32 v12, 11, v12")
        a(f"s_lshl_b32 {sT0}, {sCB}, 7")
        a(f"v_lshl_add_u32 v24, v24, 4, {sT0}")
        a("v_add_u32 v12, v12, v24")
        a(f"s_lshl_b32 {sT3}, {sLW}, 10")
        a("v_and_b32 v24, 1, v0")
        a("v_lshlrev_b32 v24, 4, v24")
        a("v_mov_b32 v25, 0x3f80")
        a("v_lshlrev_b32 v24, v24, v25")
        a("v_bfe_u32 v25, v0, 1, 2")
        for d in range(4):
            a(f"v_cmp_eq_u32 vcc, {d}, v25")
            a(f"v_cndmask_b32 v{104+d}, 0, v24, vcc")
        a("s_waitcnt lgkmcnt(0)")
        a(f"s_add_u32 {sTAG}, {sTAG}, 0x9e3779b9")
        self.vwait("S0")
        a("s_barrier")
        self.stamp(1)

        self.moe = [(164 + 4 * s, 30, GU, s * 7168) for s in range(16)] + [(228 + 4 * s, 31, DN, s * 2048) for s in range(7)]
        T_H0 = self.opt.get("th0", 0)
        T_PROC = T_H0 + 3
        self.t_cw = self.opt.get("tcw", 5)
        T_PUB = max(self.t_cw + 1, T_PROC)
        T_GAT = self.opt.get("tgat", 13)
        moe_at = self.opt.get("moe", 4)

        def gat():
            for i in range(4):
                a(f"s_mov_b32 {sT4}, {i*4*768}")
                a(f"buffer_load_dwordx4 v[{40+4*i}:{43+4*i}], v32, {WS}, {sT4} offen sc1")
            a(f"buffer_load_dwordx4 v[56:59], v33, {WS}, 0 offen sc1")
        for t in range(15):
            if t == T_GAT:
                a(f"s_mul_i32 {sT0}, {sHP}, {16*768}")
                a(f"s_lshl_b32 {sT1}, {sLW}, 8")
                a(f"s_cmp_eq_u32 {sLW}, 3")
                a(f"s_cselect_b32 {sT1}, 0, {sT1}")
                a(f"s_add_u32 {sT0}, {sT0}, {sT1}")
                a(f"s_add_u32 {sT0}, {sT0}, {WS_CS}")
                a(f"v_lshl_add_u32 v32, v23, 4, {sT0}")
                a("v_mul_u32_u24 v25, 768, v22")
                a("v_add_u32 v32, v32, v25")
                a(f"s_lshl_b32 {sT0}, {sRB}, 10")
                a(f"s_lshl_b32 {sT1}, {sLW}, 8")
                a(f"s_add_u32 {sT0}, {sT0}, {sT1}")
                a(f"v_lshl_add_u32 v33, v23, 4, {sT0}")
                gat()
                self.vm += ["GAT"] * 5
            if t + 3 < 16:
                self.stage_dma(t + 3)
            if t == T_H0:
                for i in range(4):
                    a(f"buffer_load_dwordx4 v[{72+4*i}:{75+4*i}], v29, {X}, 0 offen offset:{i*512}")
                for s_ in range(8):
                    a(f"s_mov_b32 {sT4}, {s_*8*6144}")
                    a(f"buffer_load_dwordx4 v[{40+4*s_}:{43+4*s_}], v28, {WQ}, {sT4} offen")
                self.vm += ["H0"] * 12
            if t == T_PROC:
                self.vwait("H0")
                for s_ in range(8):
                    a(f"v_mfma_f32_16x16x32_bf16 v[108:111], v[104:107], v[{40+4*s_}:{43+4*s_}], " + ("0" if s_ == 0 else "v[108:111]"))
                for k in (88, 89, 90, 96, 92, 93, 94, 95):
                    a(f"v_mov_b32 v{k}, 0")
                for i in range(4):
                    for k in range(4):
                        a(f"v_dot2c_f32_bf16 v{(88, 89, 90, 96)[k]}, {sONES}, v{72+4*i+k}")
                    for k in range(4):
                        a(f"v_dot2c_f32_bf16 v{92+k}, v{72+4*i+k}, v{72+4*i+k}")
                for r in range(4):
                    a(f"v_add_f32_dpp v{108+r}, v{108+r}, v{108+r} row_ror:8 {DPPM}")
                a(f"s_lshl_b32 {sT0}, {sHP}, 4")
                a(f"s_add_u32 {sT0}, {sT0}, {sRB}")
                a(f"s_mul_i32 {sT0}, {sT0}, 768")
                a(f"s_lshl_b32 {sT1}, {sLW}, 8")
                a(f"s_add_u32 {sT0}, {sT0}, {sT1}")
                a(f"s_add_u32 {sT0}, {sT0}, {WS_CS}")
                a(f"s_cmp_eq_u32 {sLW}, 3")
                a(f"s_cselect_b32 {sT0}, {OOB}, {sT0}")
                a(f"v_lshl_add_u32 v34, v23, 5, {sT0}")
                a("v_lshl_add_u32 v34, v22, 4, v34")
                a("v_and_b32 v25, 0x28, v0")
                a("v_cmp_eq_u32 vcc, 0, v25")
                a(f"v_mov_b32 v25, {OOB}")
                a("v_cndmask_b32 v34, v25, v34, vcc")
                a(f"v_mov_b32 v91, {sTAG}")
                for r in range(4):
                    a(f"s_mov_b32 {sT0}, {0x07060500 + r}")
                    a(f"v_perm_b32 v{108+r}, v{108+r}, v91, {sT0}")
                a("v_add_f32 v88, v88, v90")
                a("v_pk_add_f32 v[92:93], v[92:93], v[94:95]")
                a("v_add_f32 v88, v88, v89")
                a("v_add_f32 v92, v92, v93")
                a("v_add_f32 v88, v88, v96")
                for sh in (8, 4, 2, 1):
                    a(f"v_add_f32_dpp v88, v88, v88 row_ror:{sh} {DPPM}")
                    a(f"v_add_f32_dpp v92, v92, v92 row_ror:{sh} {DPPM}")
                a("v_mov_b32 v89, v88")
                a("v_mov_b32 v93, v92")
                a("v_permlane16_swap_b32 v88, v89")
                a("v_permlane16_swap_b32 v92, v93")
                a("v_add_f32 v88, v88, v89")
                a("v_add_f32 v92, v92, v93")
                self.ln_stats(88, 92, 90, None, 89)
                a("v_lshrrev_b32 v90, 16, v90")
                a("v_or_b32 v90, v90, v89")
            if t == T_PUB:
                a(f"buffer_store_dwordx4 v[108:111], v34, {WS}, 0 offen sc1")
                a(f"buffer_store_dwordx2 v[90:91], v13, {WS}, 0 offen sc1")
                self.vm += ["PUB"] * 2
            if moe_at == 1 and t >= 1:
                self.moe_ld(2)
            if moe_at == 3 and t >= 1:
                self.moe_ld(1)
            if t == 13:
                self.wo_dma(range(0, 8))
            if t == 14:
                self.wo_dma(range(8, 18))
            self.vwait(f"S{t+1}")
            a("s_barrier")
            if self.opt.get("fine"):
                self.stamp(24 + t)
            if t in (4, 8, 12):
                self.stamp({4: 2, 8: 3, 12: 4}[t])
        self.vwait("GAT")
        a(f"s_mov_b32 {sT0}, 0x0c0c0400")
        a(f"s_mov_b32 {sT1}, 0x05040100")
        a("L_h0_chk:")
        for i in range(4):
            a(f"v_perm_b32 v{60+i}, v{41+4*i}, v{40+4*i}, {sT0}")
            a(f"v_perm_b32 v{64+i}, v{43+4*i}, v{42+4*i}, {sT0}")
            a(f"v_perm_b32 v{60+i}, v{64+i}, v{60+i}, {sT1}")
        a(f"v_cmp_ne_u32 vcc, {sTAG}, v57")
        for r in (59, 60, 61, 62, 63):
            a(f"v_cmp_ne_u32 {sM1}, {sTAG}, v{r}")
            a(f"s_or_b64 vcc, vcc, {sM1}")
        a("s_cbranch_vccz L_h0_ok")
        gat()
        a("s_waitcnt vmcnt(0)")
        a(f"s_sub_u32 {sSPIN}, {sSPIN}, 1")
        a("s_cbranch_scc0 L_h0_chk")
        a(f"s_mov_b32 {sSPIN}, 0")
        a("L_h0_ok:")
        for k in range(0, 4, 2):
            a(f"v_pk_add_f32 v[{40+k}:{41+k}], v[{40+k}:{41+k}], v[{44+k}:{45+k}]")
            a(f"v_pk_add_f32 v[{48+k}:{49+k}], v[{48+k}:{49+k}], v[{52+k}:{53+k}]")
            a(f"v_pk_add_f32 v[{40+k}:{41+k}], v[{40+k}:{41+k}], v[{48+k}:{49+k}]")
        self.sum_rows([40, 41, 42, 43], 44)
        a(f"s_lshl_b32 {sT0}, {sLW}, 8")
        a(f"s_add_u32 {sT0}, {sT0}, {L_C}")
        a(f"v_lshl_add_u32 v24, v23, 4, {sT0}")
        a("ds_write_b128 v24, v[40:43]")
        a("v_and_b32 v46, 0xffff0000, v56")
        a("v_and_b32 v47, 0xffff0000, v58")
        a("v_rcp_f32 v46, v46")
        a("v_rcp_f32 v47, v47")
        a("v_lshlrev_b32 v44, 16, v56")
        a("v_lshlrev_b32 v45, 16, v58")
        a("v_sub_f32 v44, 0, v44")
        a("v_sub_f32 v45, 0, v45")
        a("v_mul_f32 v48, 0x3fb8aa3b, v46")
        a("v_mul_f32 v49, 0x3fb8aa3b, v47")
        a(f"s_lshl_b32 {sT0}, {sLW}, 7")
        a(f"s_add_u32 {sT0}, {sT0}, {L_MISC}")
        a(f"v_lshl_add_u32 v24, v23, 3, {sT0}")
        a("ds_write_b64 v24, v[44:45]")
        a("ds_write_b64 v24, v[46:47] offset:512")
        a("ds_write_b64 v24, v[48:49] offset:1024")
        a("s_waitcnt lgkmcnt(0)")
        a(f"s_lshl_b32 {sT3}, {sLW}, 10")
        self.wo_dma(range(18, 28))
        a("s_barrier")
        self.wo_dma(range(28, 32))
        self.stamp(5)
        a(f"s_lshl_b32 {sT0}, {sHP}, 2")
        a(f"s_add_u32 {sT0}, {sT0}, {sLW}")
        a(f"s_lshl_b32 {sT0}, {sT0}, 14")
        a(f"s_add_u32 {sT0}, {sT0}, {WS_KV}")
        a(f"v_lshl_add_u32 v2, v0, 4, {sT0}")
        a(f"s_lshl_b32 {sT0}, {sHP}, 1")
        a(f"s_add_u32 {sT0}, {sT0}, {sHH}")
        a(f"s_lshl_b32 {sT0}, {sT0}, 11")
        a(f"s_add_u32 {sT0}, {sT0}, {WS_Z}")
        a(f"v_lshl_add_u32 v3, v23, 7, {sT0}")
        a("v_lshl_add_u32 v3, v22, 4, v3")
        for k in range(8):
            a(f"v_mov_b32 v{112+k}, 0")
        a(f"s_mov_b32 {sT2}, 0")
        a(f"s_mov_b32 {sT0}, 0x00003f80")
        a(f"s_mov_b32 {sT1}, 0x3f800000")
        a("s_barrier")
        self.stamp(6)
        so = ["0", s4K, s8K, s12K]

        def kvld(p):
            a(f"buffer_load_dwordx4 v[{40+4*p}:{43+4*p}], v2, {WS}, {so[p>>2]} offen offset:{(p&3)*1024} sc1")

        def zld():
            a(f"buffer_load_dwordx4 v[104:107], v3, {WS}, 0 offen sc1")
            a(f"buffer_load_dwordx4 v[108:111], v3, {WS}, 0 offen offset:64 sc1")
        for p in range(16):
            kvld(p)
        zld()
        a("L_h1_round:")
        for p in range(16):
            nxt = f"L_h1_n{p}"
            bad = f"L_h1_b{p}"
            a(f"s_bitcmp1_b32 {sT2}, {p}")
            a(f"s_cbranch_scc1 {nxt}")
            a(f"s_waitcnt vmcnt({17-p})")
            a(f"v_cmp_eq_u32 vcc, -1, v{43+4*p}")
            a(f"s_cbranch_vccnz {bad}")
            for k in range(4):
                a(f"v_dot2c_f32_bf16 v{112+2*k}, {sT0}, v{40+4*p+k}")
                a(f"v_dot2c_f32_bf16 v{113+2*k}, {sT1}, v{40+4*p+k}")
            a(f"s_bitset1_b32 {sT2}, {p}")
            a(f"s_branch {nxt}")
            a(f"{bad}:")
            kvld(p)
            a(f"{nxt}:")
        a(f"s_bitcmp1_b32 {sT2}, 16")
        a("s_cbranch_scc1 L_h1_nz")
        a("s_waitcnt vmcnt(0)")
        a("v_max_u32 v4, v104, v108")
        a("v_cmp_eq_u32 vcc, -1, v4")
        a("s_cbranch_vccnz L_h1_bz")
        for sh in (8, 4, 2, 1):
            for k in range(8):
                a(f"v_add_f32_dpp v{104+k}, v{104+k}, v{104+k} row_ror:{sh} {DPPM}")
        a(f"s_bitset1_b32 {sT2}, 16")
        a("s_branch L_h1_nz")
        a("L_h1_bz:")
        zld()
        a("L_h1_nz:")
        a(f"s_cmp_eq_u32 {sT2}, 0x1ffff")
        a("s_cbranch_scc1 L_h1_done")
        a("s_waitcnt vmcnt(0)")
        a(f"s_sub_u32 {sSPIN}, {sSPIN}, 1")
        a("s_cbranch_scc0 L_h1_round")
        a(f"s_mov_b32 {sSPIN}, 0")
        a("L_h1_done:")
        a(f"s_or_b32 {sT0}, s2, {sLW}")
        a(f"s_cmp_eq_u32 {sT0}, 0")
        a(f"s_cselect_b32 {sT0}, 0, {OOB}")
        a(f"s_add_u32 {sT0}, {sT0}, {WS_EPOCH}")
        a(f"v_mov_b32 v6, {sT0}")
        a(f"v_mov_b32 v7, {sTAG}")
        a(f"buffer_store_dword v7, v6, {WS}, 0 offen sc1")
        for k in range(4):
            a(f"v_cvt_pk_bf16_f32 v{120+k}, v{112+2*k}, v{113+2*k}")
        for k in range(4):
            a(f"v_cvt_pk_bf16_f32 v{124+k}, v{104+2*k}, v{105+2*k}")
        a(f"s_mul_i32 {sT0}, {sHH}, 3072")
        a(f"s_add_u32 {sT0}, {sT0}, {L_KVF}")
        a(f"v_lshl_add_u32 v4, v0, 4, {sT0}")
        a(f"s_lshl_b32 {sT0}, {sTH}, 10")
        a(f"v_add_u32 v5, {sT0}, v4")
        a("ds_write_b128 v5, v[120:123]")
        a("ds_write_b128 v4, v[124:127] offset:2048")
        a("s_waitcnt vmcnt(0) lgkmcnt(0)")
        self.stamp(7)
        a("s_barrier")
        a("s_barrier")
        a("v_mov_b32 v11, v30")
        a("v_mov_b32 v14, v31")
        a("s_branch L_phaseB")

    def ln_stats(self, s1, s2, m, rs, t):
        a = self.a
        a(f"v_mul_f32 v{s1}, 0x3a800000, v{s1}")
        a(f"v_mul_f32 v{s2}, 0x3a800000, v{s2}")
        a(f"v_fma_f32 v{s2}, -v{s1}, v{s1}, v{s2}")
        a(f"v_max_f32 v{s2}, 0, v{s2}")
        a(f"v_cvt_pk_bf16_f32 v{t}, v{s1}, v{s2}")
        a(f"v_lshlrev_b32 v{m}, 16, v{t}")
        a(f"v_and_b32 v{t}, 0xffff0000, v{t}")
        a(f"v_add_f32 v{t}, 0x3727c5ac, v{t}")
        self.rbf(t, t)
        a(f"v_sqrt_f32 v{t}, v{t}")
        self.rbf(t, t)
        if rs is not None:
            a(f"v_rcp_f32 v{rs}, v{t}")

    def compute(self):
        a = self.a
        ACC = 128
        a("L_comp:")
        a("v_and_b32 v20, 15, v0")
        a("v_lshrrev_b32 v21, 4, v0")
        a("v_bfe_u32 v22, v0, 1, 3")
        a(f"s_lshl_b32 {sT0}, {sTH}, 13")
        a(f"v_lshl_add_u32 v20, v20, 7, {sT0}")
        for j in range(2):
            a(f"v_or_b32 v23, {4*j}, v21")
            a("v_xor_b32 v23, v23, v22")
            a(f"v_lshl_add_u32 v{2+j}, v23, 4, v20")
        a("v_bfe_u32 v22, v0, 2, 2")
        a("v_lshl_add_u32 v22, v21, 3, v22")
        a("v_lshlrev_b32 v22, 7, v22")
        a("v_bfe_u32 v23, v0, 3, 2")
        a(f"s_lshl_b32 {sT0}, {sHH}, 1")
        a(f"v_xor_b32 v23, {sT0}, v23")
        a("v_lshl_add_u32 v22, v23, 5, v22")
        a("v_and_b32 v23, 3, v0")
        a("v_lshl_add_u32 v22, v23, 3, v22")
        a(f"v_add_u32 v4, {BOFF}, v22")
        a("v_xor_b32 v5, 32, v4")
        a("s_lshl_b32 s53, s2, 2")
        a(f"s_add_u32 s53, s53, {sW}")
        a("s_mul_i32 s53, s53, 6400")
        a(f"s_add_u32 s53, s53, {WS_ARENA}")
        a("v_lshl_add_u32 v6, v0, 4, s53")
        for k in range(4):
            a(f"v_mov_b32 v{8+k}, -1")
        a("s_waitcnt lgkmcnt(0)")
        self.srds(["WS", "X", "WO", "OUT", "DBG", "GU", "DN", "WR"])
        srd(a, 12, 84, 0)
        a("s_add_u32 s14, s53, 6400")
        self.stamp(0)
        for r in range(96):
            a(f"v_mov_b32 v{ACC+r}, 0")
        a(f"s_mov_b32 {sEPS}, 0x358637bd")
        a("s_mov_b32 s55, 0x358637bd")
        FR = [40, 80]

        def reads(j, fs):
            f = FR[fs]
            o = []
            for i in range(4):
                o.append(f"ds_read_b128 v[{f+4*i}:{f+4*i+3}], v{2+j} offset:{i*2048}")
            for m in range(3):
                for nb in range(2):
                    d = f + 16 + 4 * (m * 2 + nb)
                    o.append(f"ds_read_b64_tr_b16 v[{d}:{d+1}], v{4+nb} offset:{m*8192 + j*4096}")
                    o.append(f"ds_read_b64_tr_b16 v[{d+2}:{d+3}], v{4+nb} offset:{m*8192 + j*4096 + 512}")
            return o

        def mfmas(fs, order=range(6)):
            f = FR[fs]
            o = []
            for n in order:
                for i in range(4):
                    acc = vr(ACC + (n * 4 + i) * 4, 4)
                    A = vr(f + 4 * i, 4)
                    B = vr(f + 16 + 4 * n, 4)
                    if n < 2:
                        A, B = B, A
                    o.append(f"v_mfma_f32_16x16x32_bf16 {acc}, {A}, {B}, {acc}")
            return o

        def step(fs, rd, first=(), extra=None, order=range(6)):
            a("s_waitcnt lgkmcnt(0)")
            mm = mfmas(fs, order)
            for g, x in enumerate(mm):
                a(x)
                if g == 0:
                    for y in first:
                        a(y)
                if g < len(rd):
                    a(rd[g])
                if extra and g in extra:
                    for y in extra[g]:
                        a(y)

        a("s_mov_b32 s62, 0")
        a("s_mov_b32 s63, 0")
        a("s_barrier")
        self.stamp(1)
        for x in reads(0, 0):
            a(x)
        a("L_cloop:")
        adv = {16: [f"s_add_u32 s63, s63, 1", f"s_cmp_eq_u32 s63, {NBUF}", f"s_cselect_b32 s53, {(-NBUF*STAGE) & 0xffffffff}, 0",
                    "s_cselect_b32 s63, 0, s63", f"s_add_u32 s53, s53, {STAGE}"],
               17: ["v_add_u32 v2, s53, v2"], 18: ["v_add_u32 v4, s53, v4"], 19: ["v_add_u32 v5, s53, v5"],
               20: ["v_add_u32 v3, s53, v3"]}
        cper = self.opt.get("cper", 2)
        if self.opt.get("clr", 1):
            nit = (7 + cper - 1) // cper
            assert nit <= self.t_cw
            cl = [f"s_cmp_ge_u32 s62, {nit}", "s_cbranch_scc1 L_cl_none"]
            for k in range(cper):
                cl.append(f"buffer_store_dwordx4 v[8:11], v6, {CLR}, 0 offen offset:{k*1024} sc1")
            cl += [f"v_add_u32 v6, {cper*1024}, v6", "L_cl_none:"]
            adv[21] = cl
        step(0, reads(1, 1), extra=adv)
        tail = {17: [f"s_cmp_lg_u32 s62, {self.t_cw}", "s_cbranch_scc1 L_cl_nw", "s_waitcnt vmcnt(0)", "L_cl_nw:"],
                20: ["s_add_u32 s62, s62, 1"], 23: ["s_cmp_lt_u32 s62, 15", "s_cbranch_scc1 L_cloop"]}
        step(1, reads(0, 0), first=["s_barrier"], extra=tail)
        NM, RS, RSL, CK, CQ, QS = 40, 56, 224, 72, 28, 240
        pre = {16: ["v_lshrrev_b32 v21, 4, v0", "v_and_b32 v22, 15, v0"],
               17: [f"s_lshl_b32 {sT0}, {sTH}, 8", f"s_add_u32 {sT0}, {sT0}, {L_MISC}", f"v_lshl_add_u32 v6, v21, 4, {sT0}"],
               18: [f"v_lshl_add_u32 v7, v22, 2, {sT0}"],
               19: [f"s_lshl_b32 {sT0}, {sHH}, 7", f"s_add_u32 {sT0}, {sT0}, {L_C}", f"v_lshl_add_u32 v8, v22, 2, {sT0}"],
               20: [f"v_lshl_add_u32 v9, v21, 4, {sT0}"]}
        step(0, reads(1, 1), extra=pre)
        rd = []
        for i in range(4):
            rd.append(f"ds_read_b128 v[{NM+4*i}:{NM+4*i+3}], v6 offset:{i*64}")
        for n in range(4):
            rd.append(f"ds_read_b32 v{CK+n}, v8 offset:{256*(1+(n>>1)) + 64*(n&1)}")
        for i in range(4):
            rd.append(f"ds_read_b128 v[{RS+4*i}:{RS+4*i+3}], v6 offset:{512 + i*64}")
        for i in range(4):
            rd.append(f"ds_read_b128 v[{RSL+4*i}:{RSL+4*i+3}], v6 offset:{1024 + i*64}")
        for n in range(2):
            rd.append(f"ds_read_b128 v[{CQ+4*n}:{CQ+4*n+3}], v9 offset:{64*n}")
        step(1, rd, first=["s_barrier"], order=(2, 3, 4, 5, 0, 1))
        for i in range(4):
            for k in range(3):
                a(f"ds_read_b32 v{QS+4*k+i}, v7 offset:{512*k + 64*i}")
        self.stamp(5)
        a("s_waitcnt lgkmcnt(12)")
        PK, PV, T = 80, 96, 112

        def phi(acc, dst, u_op, rs_op, rsl_op, tmp):
            a(f"v_pk_fma_f32 v[{acc}:{acc+1}], {u_op}")
            a(f"v_pk_mul_f32 v[{tmp}:{tmp+1}], v[{acc}:{acc+1}], {rsl_op}")
            a(f"v_pk_fma_f32 v[{acc}:{acc+1}], v[{acc}:{acc+1}], {rs_op}")
            a(f"v_exp_f32 v{tmp}, v{tmp} clamp")
            a(f"v_exp_f32 v{tmp+1}, v{tmp+1} clamp")
            a(f"v_max_f32 v{acc}, {sEPS}, v{acc}")
            a(f"v_max_f32 v{acc+1}, {sEPS}, v{acc+1}")
            a(f"v_pk_add_f32 v[{acc}:{acc+1}], v[{acc}:{acc+1}], v[{tmp}:{tmp+1}]")
            a(f"v_cvt_pk_bf16_f32 v{dst}, v{acc}, v{acc+1}")

        def csel(n):
            return "op_sel:[0,1,0] op_sel_hi:[1,1,1]" if n & 1 else "op_sel_hi:[1,0,1]"

        k = 0
        for n in (2, 3):
            for i in range(4):
                for h in range(2):
                    acc = ACC + (n * 4 + i) * 4 + 2 * h
                    s = 4 * i + 2 * h
                    phi(acc, PK + (n - 2) * 8 + 2 * i + h,
                        f"v[{NM+s}:{NM+s+1}], v[{CK}:{CK+1}], v[{acc}:{acc+1}] {csel(n)}",
                        f"v[{RS+s}:{RS+s+1}], s[54:55]", f"v[{RSL+s}:{RSL+s+1}]", T + 2 * (k & 3))
                    k += 1
        for r in range(4):
            a(f"v_mov_b32 v{120+r}, {sONES}")
        for n in (4, 5):
            for i in range(4):
                for h in range(2):
                    acc = ACC + (n * 4 + i) * 4 + 2 * h
                    s = 4 * i + 2 * h
                    a(f"v_pk_fma_f32 v[{acc}:{acc+1}], v[{NM+s}:{NM+s+1}], v[{CK+2}:{CK+3}], v[{acc}:{acc+1}] {csel(n)}")
                    a(f"v_pk_mul_f32 v[{acc}:{acc+1}], v[{acc}:{acc+1}], v[{RS+s}:{RS+s+1}]")
                    a(f"v_cvt_pk_bf16_f32 v{PV + (n-4)*8 + 2*i + h}, v{acc}, v{acc+1}")
        KEEP, SEND = 160, 172

        def kvm(th):
            for p in range(2):
                for dst, b in ((SEND, 1 - th), (KEEP, th)):
                    for aa in range(2):
                        d = vr(dst + 4 * aa, 4)
                        a(f"v_mfma_f32_16x16x32_bf16 {d}, {vr(PK+aa*8+4*p,4)}, {vr(PV+b*8+4*p,4)}, {'0' if p == 0 else d}")
                    d = vr(dst + 8, 4)
                    a(f"v_mfma_f32_16x16x32_bf16 {d}, {vr(PK+b*8+4*p,4)}, v[120:123], {'0' if p == 0 else d}")
        a(f"s_mul_i32 {sT0}, {sW}, 3072")
        a(f"s_add_u32 {sT0}, {sT0}, {L_XKV}")
        a(f"v_lshl_add_u32 v6, v0, 4, {sT0}")
        a(f"s_xor_b32 {sT0}, {sW}, 1")
        a(f"s_mul_i32 {sT0}, {sT0}, 3072")
        a(f"s_add_u32 {sT0}, {sT0}, {L_XKV}")
        a(f"v_lshl_add_u32 v7, v0, 4, {sT0}")
        a(f"s_cmp_eq_u32 {sTH}, 1")
        a("s_cbranch_scc1 L_kv1")
        kvm(0)
        a("s_branch L_kvd")
        a("L_kv1:")
        kvm(1)
        a("L_kvd:")
        a(f"s_lshl_b32 {sT0}, {sHP}, 1")
        a(f"s_add_u32 {sT0}, {sT0}, {sHH}")
        a(f"s_lshl_b32 {sT1}, {sT0}, 1")
        a(f"s_add_u32 {sT1}, {sT1}, {sTH}")
        a(f"s_lshl_b32 {sT1}, {sT1}, 4")
        a(f"s_add_u32 {sT1}, {sT1}, {sRB}")
        a(f"s_lshl_b32 {sT1}, {sT1}, 10")
        a(f"s_add_u32 {sT1}, {sT1}, {WS_KV}")
        a(f"v_lshl_add_u32 v8, v0, 4, {sT1}")
        a(f"s_lshl_b32 {sT1}, {sT0}, 4")
        a(f"s_add_u32 {sT1}, {sT1}, {sRB}")
        a(f"s_lshl_b32 {sT1}, {sT1}, 7")
        a(f"s_lshl_b32 {sT2}, {sTH}, 6")
        a(f"s_add_u32 {sT1}, {sT1}, {sT2}")
        a(f"s_add_u32 {sT1}, {sT1}, {WS_Z}")
        a(f"v_lshl_add_u32 v9, v21, 4, {sT1}")
        a("v_cmp_eq_u32 vcc, 0, v22")
        a(f"v_mov_b32 v10, {OOB}")
        a("v_cndmask_b32 v9, v10, v9, vcc")
        for k in range(3):
            a(f"ds_write_b128 v6, v[{SEND+4*k}:{SEND+4*k+3}] offset:{k*1024}")
        a("s_waitcnt lgkmcnt(0)")
        a("s_barrier")
        for k in range(3):
            a(f"ds_read_b128 v[{SEND+4*k}:{SEND+4*k+3}], v7 offset:{k*1024}")
        a(f"s_lshl_b32 {sT1}, {sRB}, 3")
        a(f"s_lshl_b32 {sT2}, {sTH}, 2")
        a(f"s_add_u32 {sT1}, {sT1}, {sT2}")
        a(f"s_lshl_b32 {sT1}, {sT1}, 5")
        a(f"s_add_u32 {sT1}, {sT1}, {sT0}")
        a(f"s_lshl_b32 {sT1}, {sT1}, 10")
        a(f"s_add_u32 {sT1}, {sT1}, {WS_O}")
        a(f"v_lshl_add_u32 v10, v0, 4, {sT1}")
        a(f"s_mul_i32 {sT1}, {sHH}, 3072")
        a(f"s_add_u32 {sT1}, {sT1}, {L_KVF}")
        a(f"v_lshl_add_u32 v11, v0, 4, {sT1}")
        a("s_waitcnt lgkmcnt(0)")
        for k in range(0, 12, 2):
            a(f"v_pk_add_f32 v[{KEEP+k}:{KEEP+k+1}], v[{KEEP+k}:{KEEP+k+1}], v[{SEND+k}:{SEND+k+1}]")
        for k in range(4):
            a(f"v_cvt_pk_bf16_f32 v{184+k}, v{KEEP+2*k}, v{KEEP+2*k+1}")
        a(f"buffer_store_dwordx4 v[184:187], v8, {WS}, 0 offen sc1")
        a(f"buffer_store_dwordx4 v[{KEEP+8}:{KEEP+11}], v9, {WS}, 0 offen sc1")
        self.stamp(6)
        PQ = 80
        k = 0
        for i in range(4):
            sel = "op_sel:[0,1,0] op_sel_hi:[1,1,1]" if i & 1 else "op_sel_hi:[1,0,1]"
            sel2 = "op_sel:[0,1] op_sel_hi:[1,1]" if i & 1 else "op_sel_hi:[1,0]"
            b = i & 2
            for n in range(2):
                for h in range(2):
                    acc = ACC + (n * 4 + i) * 4 + 2 * h
                    c = CQ + 4 * n + 2 * h
                    phi(acc, PQ + 4 * i + 2 * n + h,
                        f"v[{c}:{c+1}], v[{QS+b}:{QS+b+1}], v[{acc}:{acc+1}] {sel}",
                        f"v[{QS+4+b}:{QS+5+b}], s[54:55] {sel}", f"v[{QS+8+b}:{QS+9+b}] {sel2}", T + 2 * (k & 3))
                    k += 1
        self.stamp(7)
        a("s_barrier")
        for k in range(3):
            a(f"ds_read_b128 v[{40+4*k}:{43+4*k}], v11 offset:{k*1024}")
        a(f"s_mov_b32 {sT0}, 0x8000")
        a(f"s_mov_b32 {sT1}, 0x10000")
        a(f"s_mov_b32 {sT2}, 0x18000")
        a("s_waitcnt lgkmcnt(0)")
        a("s_barrier")
        O = 128
        for i in range(4):
            for k in (2, 0, 1):
                a(f"v_mfma_f32_16x16x32_bf16 {vr(O+12*i+4*k,4)}, {vr(40+4*k,4)}, {vr(PQ+4*i,4)}, 0")
        for i in range(4):
            o = O + 12 * i
            a(f"v_add_f32 v{o+8}, {sEPS}, v{o+8}")
            a(f"v_rcp_f32 v{o+8}, v{o+8}")
            for k in range(0, 8, 2):
                a(f"v_pk_mul_f32 v[{o+k}:{o+k+1}], v[{o+k}:{o+k+1}], v[{o+8}:{o+9}] op_sel_hi:[1,0]")
            for k in range(4):
                a(f"v_cvt_pk_bf16_f32 v{60+4*i+k}, v{o+2*k}, v{o+2*k+1}")
            a(f"buffer_store_dwordx4 v[{60+4*i}:{63+4*i}], v10, {WS}, {['0', sT0, sT1, sT2][i]} offen sc1")
        self.stamp(8)
        if self.moe:
            a(f"v_mov_b32 v14, {OOB}")
            a(f"v_mov_b32 v11, {OOB}")

    def phase_b(self):
        a = self.a
        OF, ACC, WF, WA, SA, CHK = 16, 80, 112, 144, 148, 156
        sT, sKH = "s53", "s62"
        a("L_phaseB:")
        a(f"s_lshr_b32 {sKH}, {sW}, 2")
        a(f"s_lshl_b32 {sT}, {sRBB}, 3")
        a(f"s_lshl_b32 {sT0}, {sLW}, 1")
        a(f"s_add_u32 {sT}, {sT}, {sT0}")
        a(f"s_add_u32 {sT}, {sT}, {sKH}")
        a("v_lshrrev_b32 v1, 4, v0")
        a("v_and_b32 v2, 15, v0")
        a("v_lshlrev_b32 v3, 4, v0")
        a(f"buffer_load_dwordx4 v[{WF}:{WF+3}], v3, {WR}, 0 offen")
        a(f"buffer_load_dwordx4 v[{WF+4}:{WF+7}], v3, {WR}, 0 offen offset:1024")
        a(f"s_lshl_b32 {sT0}, {sCB}, 7")
        a(f"v_lshl_add_u32 v4, v1, 3, {sT0}")
        for ct in range(4):
            a(f"buffer_load_dwordx2 v[{SA+2*ct}:{SA+2*ct+1}], v4, {WR}, 0 offen offset:{ct*32}")
        a(f"s_lshl_b32 {sT1}, {sT}, 4")
        a(f"v_add_u32 v6, {sT1}, v2")
        a("v_lshlrev_b32 v5, 11, v6")
        a("v_sub_u32 v6, 2047, v6")
        a("v_add_u32 v7, v5, v4")
        a(f"v_add_u32 v5, {sT0}, v5")
        a("v_lshrrev_b32 v8, 1, v1")
        a("v_and_b32 v9, 1, v1")
        a("v_lshl_add_u32 v8, v9, 1, v8")
        a("v_lshl_add_u32 v5, v8, 4, v5")
        a(f"s_lshl_b32 {sT0}, {sT}, 15")
        a(f"s_lshl_b32 {sT1}, {sKH}, 14")
        a(f"s_add_u32 {sT0}, {sT0}, {sT1}")
        a(f"s_add_u32 {sT0}, {sT0}, {WS_O}")
        a(f"v_lshl_add_u32 v157, v0, 4, {sT0}")
        a("v_xor_b32 v158, 0x8000, v157")
        a(f"s_and_b32 {sT0}, {sT0}, 0xffff7fff")
        a(f"s_add_u32 {sT0}, {sT0}, 1020")
        a(f"v_lshl_add_u32 v159, v2, 10, {sT0}")
        a("v_lshl_add_u32 v159, v9, 15, v159")
        a("v_bfe_u32 v8, v0, 2, 2")
        a("v_lshl_add_u32 v8, v1, 2, v8")
        a("v_bfe_u32 v9, v8, 1, 2")
        a("v_lshlrev_b32 v8, 7, v8")
        a("v_lshl_add_u32 v8, v9, 5, v8")
        a("v_and_b32 v9, 3, v0")
        a("v_lshl_add_u32 v8, v9, 3, v8")
        a(f"s_lshl_b32 {sT0}, {sKH}, 16")
        a(f"s_add_u32 {sT0}, {sT0}, {L_WO}")
        a(f"v_add_u32 v10, {sT0}, v8")
        a("v_cmp_eq_u32 s[4:5], 1, v9")
        a("v_cmp_eq_u32 s[6:7], 2, v9")
        a("v_cmp_eq_u32 s[98:99], 3, v9")
        a(f"s_lshl_b32 {sT0}, {sT}, 12")
        a(f"s_add_u32 {sT0}, {sT0}, {WS_S2}")
        a(f"v_lshl_add_u32 v160, v0, 4, {sT0}")
        a(f"s_lshl_b32 {sT1}, {sCB}, 8")
        a(f"s_add_u32 {sT0}, {sT0}, {sT1}")
        a(f"v_lshl_add_u32 v161, v2, 4, {sT0}")
        a("v_lshrrev_b32 v8, 2, v2")
        a("v_cmp_eq_u32 vcc, v8, v1")
        a(f"v_mov_b32 v8, {OOB}")
        a("v_cndmask_b32 v161, v8, v161, vcc")
        a(f"s_lshl_b32 {sT0}, {sW}, 12")
        a(f"s_cmp_ge_u32 {sW}, 6")
        a(f"s_cselect_b32 {sT1}, {(L_MISC - 6*4096 - L_XCH) & 0xffffffff}, 0")
        a(f"s_add_u32 {sT0}, {sT0}, {sT1}")
        a(f"s_add_u32 {sT0}, {sT0}, {L_XCH}")
        a(f"v_lshl_add_u32 v162, v0, 4, {sT0}")
        a(f"s_xor_b32 {sT2}, {sW}, 4")
        a(f"s_lshl_b32 {sT0}, {sT2}, 12")
        a(f"s_cmp_ge_u32 {sT2}, 6")
        a(f"s_cselect_b32 {sT1}, {(L_MISC - 6*4096 - L_XCH) & 0xffffffff}, 0")
        a(f"s_add_u32 {sT0}, {sT0}, {sT1}")
        a(f"s_add_u32 {sT0}, {sT0}, {L_XCH}")
        a(f"v_lshl_add_u32 v163, v0, 4, {sT0}")
        a("s_waitcnt vmcnt(0)")
        a("v_mov_b32 v8, 0")
        for k in range(8):
            a(f"v_dot2c_f32_bf16 v8, {sONES}, v{WF+k}")
        a("v_cmp_eq_u32 vcc, 0, v9")
        a(f"v_mov_b32 v12, {sONES}")
        a("v_cndmask_b32 v12, 0, v12, vcc")
        for k in range(8):
            a(f"v_cndmask_b32 v{SA+k}, v12, v{SA+k}, {sM1}")
        for sh in (8, 4, 2, 1):
            a(f"v_add_f32_dpp v8, v8, v8 row_ror:{sh} {DPPM}")
        self.sum_rows([8], 12)
        a(f"v_readfirstlane_b32 {sW1}, v8")
        a("L_b_restart:")
        for ct in range(4):
            a(f"buffer_load_dwordx2 v[{WF+2*ct}:{WF+2*ct+1}], v7, {X}, 0 offen offset:{ct*32}")
        for ct in range(4):
            a(f"v_xor_b32 v{WA+ct}, {ct*32}, v10")
        for k in range(16):
            a(f"v_mov_b32 v{ACC+16+k}, 0")
        a(f"v_mov_b32 v{CHK}, 0")
        a("s_waitcnt vmcnt(0)")
        for k in range(8):
            a(f"v_lshlrev_b32 v{ACC+2*k}, 16, v{WF+k}")
            a(f"v_and_b32 v{ACC+2*k+1}, 0xffff0000, v{WF+k}")
        self.stamp(9)
        a("L_b_poll:")
        a(f"buffer_load_dword v8, v159, {WS}, 0 offen sc1")
        a("s_waitcnt vmcnt(0)")
        a("v_cmp_eq_u32 vcc, -1, v8")
        self.spin_check("L_b_poll")
        self.stamp(10)
        so = ["0", s4K, s8K, s12K]

        def old(h):
            return [f"buffer_load_dwordx4 v[{OF+8*(h&7)+4*tt}:{OF+8*(h&7)+4*tt+3}], v{157+tt}, {WS}, {so[h>>2]} offen offset:{(h&3)*1024} sc1"
                    for tt in range(2)]

        def wrd(h):
            f = WF + 16 * (h & 1)
            off = h * 4096
            o = []
            for ct in range(4):
                o.append(f"ds_read_b64_tr_b16 v[{f+4*ct}:{f+4*ct+1}], v{WA+ct} offset:{off}")
                o.append(f"ds_read_b64_tr_b16 v[{f+4*ct+2}:{f+4*ct+3}], v{WA+ct} offset:{off+2048}")
            return o
        for h in range(8):
            for x in old(h):
                a(x)
        for x in wrd(0):
            a(x)
        m4 = self.opt.get("moe", 4) == 4
        if m4:
            self.moe = [(d, {30: 11, 31: 14}[v], r, o) for d, v, r, o in self.moe]
        for h in range(16):
            nout = 14 if h <= 8 else 2 * (15 - h)
            if m4 and h > 8:
                nout += 2 * (h - 8)
            a(f"s_waitcnt vmcnt({nout}) lgkmcnt(0)")
            s = OF + 8 * (h & 7)
            a(f"v_max3_u32 v{CHK}, v{CHK}, v{s+3}, v{s+7}")
            if h == 15:
                a(f"v_cmp_eq_u32 vcc, -1, v{CHK}")
                self.spin_check("L_b_restart")
                if self.moe and not m4:
                    a(f"s_cmp_eq_u32 {sKH}, 0")
                    a("s_cbranch_scc1 L_b_nomoe")
                    self.moe = [(d, {30: 11, 31: 14}[v], r, o) for d, v, r, o in self.moe]
                    self.moe_ld(23)
                    a("L_b_nomoe:")
            rd = wrd(h + 1) if h < 15 else []
            g = 0
            for ct in range(4):
                for tt in range(2):
                    d = vr(ACC + 16 * tt + 4 * ct, 4)
                    a(f"v_mfma_f32_16x16x32_bf16 {d}, {vr(WF+16*(h&1)+4*ct,4)}, {vr(s+4*tt,4)}, {d}")
                    if rd:
                        a(rd[g])
                    if m4 and h >= 8 and g in (1, 5):
                        self.moe_ld(1)
                    g += 1
            if h < 8:
                for x in old(h + 8):
                    a(x)
        for ct in range(4):
            a(f"ds_write_b128 v162, v[{ACC+16+4*ct}:{ACC+19+4*ct}] offset:{ct*1024}")
        a("s_waitcnt lgkmcnt(0)")
        self.stamp(11)
        a("s_barrier")
        H, HF, HN = 32, 40, 96
        for ct in range(4):
            a(f"ds_read_b128 v[{16+4*ct}:{19+4*ct}], v163 offset:{ct*1024}")
        for ct in range(4):
            a(f"s_waitcnt lgkmcnt({3-ct})")
            for k in range(2):
                r = 4 * ct + 2 * k
                a(f"v_pk_add_f32 v[{ACC+r}:{ACC+r+1}], v[{ACC+r}:{ACC+r+1}], v[{16+r}:{17+r}]")
            for k in range(2):
                r = 4 * ct + 2 * k
                a(f"v_cvt_pk_bf16_f32 v{H+2*ct+k}, v{ACC+r}, v{ACC+r+1}")
        ST, GR = 56, 60
        a(f"v_mfma_f32_16x16x32_bf16 v[{GR}:{GR+3}], v[{H}:{H+3}], v[{H}:{H+3}], 0")
        a(f"v_mfma_f32_16x16x32_bf16 v[{ST}:{ST+3}], v[{SA}:{SA+3}], v[{H}:{H+3}], 0")
        a(f"v_mfma_f32_16x16x32_bf16 v[{GR}:{GR+3}], v[{H+4}:{H+7}], v[{H+4}:{H+7}], v[{GR}:{GR+3}]")
        a(f"v_mfma_f32_16x16x32_bf16 v[{ST}:{ST+3}], v[{SA+4}:{SA+7}], v[{H+4}:{H+7}], v[{ST}:{ST+3}]")
        for k in range(4):
            a(f"v_lshlrev_b32 v{HF+2*k}, 16, v{H+k}")
            a(f"v_and_b32 v{HF+2*k+1}, 0xffff0000, v{H+k}")
        a(f"v_cndmask_b32 v{GR}, v{GR}, v{GR+1}, {sM1}")
        a(f"v_cndmask_b32 v{GR}, v{GR}, v{GR+2}, {sM2}")
        a(f"v_cndmask_b32 v{ST+2}, v{GR}, v{GR+3}, {sM3}")
        a(f"buffer_store_dwordx4 v[{ST}:{ST+3}], v161, {WS}, 0 offen sc1")
        self.stamp(12)
        for k in range(4, 8):
            a(f"v_lshlrev_b32 v{HF+2*k}, 16, v{H+k}")
            a(f"v_and_b32 v{HF+2*k+1}, 0xffff0000, v{H+k}")
        R = 64
        a("L_h3:")
        for i in range(4):
            a(f"buffer_load_dwordx4 v[{R+4*i}:{R+4*i+3}], v160, {WS}, 0 offen offset:{i*1024} sc1")
        a("s_waitcnt vmcnt(0)")
        a(f"v_max3_u32 v8, v{R+2}, v{R+6}, v{R+10}")
        a(f"v_max_u32 v8, v8, v{R+14}")
        a("v_cmp_eq_u32 vcc, -1, v8")
        self.spin_check("L_h3")
        self.stamp(13)
        a(f"v_pk_add_f32 v[{R}:{R+1}], v[{R}:{R+1}], v[{R+4}:{R+5}]")
        a(f"v_add_f32 v{R+2}, v{R+2}, v{R+6}")
        a(f"v_pk_add_f32 v[{R+8}:{R+9}], v[{R+8}:{R+9}], v[{R+12}:{R+13}]")
        a(f"v_add_f32 v{R+10}, v{R+10}, v{R+14}")
        a(f"v_pk_add_f32 v[{R}:{R+1}], v[{R}:{R+1}], v[{R+8}:{R+9}]")
        a(f"v_add_f32 v{R+2}, v{R+2}, v{R+10}")
        self.sum_rows([R, R + 1, R + 2], R + 4)
        M_, RS_, RV, KEY, NMR = R + 4, R + 6, 12, 13, R + 8
        self.ln_stats(R, R + 2, M_, RS_, R + 5)
        a(f"v_fma_f32 v{RV}, -v{M_}, {sW1}, v{R+1}")
        a(f"v_mul_f32 v{RV}, v{RV}, v{RS_}")
        a(f"v_mul_f32 v{NMR}, -v{M_}, v{RS_}")
        a(f"v_ashrrev_i32 v8, 31, v{RV}")
        a("v_or_b32 v8, 0x80000000, v8")
        a(f"v_xor_b32 v8, v8, v{RV}")
        a("v_and_b32 v8, 0xfffff800, v8")
        a(f"v_or_b32 v{KEY}, v8, v6")
        a(f"s_lshl_b32 {sT0}, {sW}, 6")
        a(f"s_add_u32 {sT0}, {sT0}, {L_KEYS}")
        a(f"v_lshl_add_u32 v8, v2, 2, {sT0}")
        a(f"ds_write_b32 v8, v{KEY}")
        for k in range(8):
            a(f"v_pk_fma_f32 v[{16+2*k}:{17+2*k}], v[{HF+2*k}:{HF+2*k+1}], v[{RS_}:{RS_+1}], v[{NMR}:{NMR+1}] op_sel_hi:[1,0,0]")
        a("v_lshlrev_b32 v8, 3, v0")
        a(f"v_add_u32 v8, {L_KEYS}, v8")
        a("s_waitcnt lgkmcnt(0)")
        a("s_barrier")
        a(f"ds_read_b64 v[{R}:{R+1}], v8")
        for k in range(8):
            a(f"v_cvt_pk_bf16_f32 v{HN+k}, v{16+2*k}, v{17+2*k}")
        a("s_waitcnt lgkmcnt(0)")
        a(f"v_max_u32 v{R+2}, v{R}, v{R+1}")
        a(f"v_min_u32 v{R+3}, v{R}, v{R+1}")
        self.top2(R + 2, R + 3, R, R + 1, 4, sK1, sK2)
        a(f"v_cmp_eq_u32 s[4:5], {sK1}, v{KEY}")
        a(f"v_cmp_eq_u32 s[6:7], {sK2}, v{KEY}")
        a(f"s_or_b64 {sCAND}, s[4:5], s[6:7]")
        a("s_cbranch_scc0 L_nocand")
        a(f"s_lshl_b32 {sT0}, {sRBB}, 12")
        a(f"s_lshl_b32 {sT1}, {sCB}, 7")
        a(f"s_add_u32 {sT0}, {sT0}, {sT1}")
        a(f"s_add_u32 {sT0}, {sT0}, {WS_CAND}")
        a(f"v_lshl_add_u32 v8, v1, 3, {sT0}")
        a("v_add_u32 v9, 2048, v8")
        a("v_cndmask_b32 v8, v8, v9, s[6:7]")
        a(f"v_mov_b32 v9, {OOB}")
        a(f"v_cndmask_b32 v8, v9, v8, {sCAND}")
        for ct in range(4):
            a(f"buffer_store_dwordx2 v[{HN+2*ct}:{HN+2*ct+1}], v8, {WS}, 0 offen offset:{ct*32} sc1")
        a("L_nocand:")
        a(f"s_cmp_lg_u32 {sW}, 0")
        a("s_cbranch_scc1 L_nokey")
        a(f"s_lshl_b32 {sT0}, {sCB}, 7")
        a(f"s_lshl_b32 {sT1}, {sRBB}, 3")
        a(f"s_add_u32 {sT0}, {sT0}, {sT1}")
        a(f"s_add_u32 {sT0}, {sT0}, {WS_KEY}")
        a(f"v_mov_b32 v8, {sT0}")
        a(f"v_mov_b32 v9, {OOB}")
        a("v_cmp_eq_u32 vcc, 0, v0")
        a("v_cndmask_b32 v8, v9, v8, vcc")
        a(f"v_mov_b32 v10, {sK1}")
        a(f"v_mov_b32 v11, {sK2}")
        a(f"buffer_store_dwordx2 v[10:11], v8, {WS}, 0 offen sc1")
        a("L_nokey:")
        self.stamp(14)
        SEG, VK = 112, 128
        a(f"s_bfe_u32 {sT0}, s2, 0x20001")
        a(f"s_lshl_b32 {sT0}, {sT0}, 2")
        a(f"s_add_u32 {sT0}, {sT0}, {sLW}")
        a(f"s_lshl_b32 {sT0}, {sT0}, 7")
        a(f"s_add_u32 {sT1}, {sT0}, {WS_KEY}")
        a("v_and_b32 v8, 31, v0")
        a(f"v_lshl_add_u32 v129, v8, 2, {sT1}")
        a(f"s_add_u32 {sT1}, {sT0}, {WS_CAND}")
        a("v_and_b32 v8, 7, v0")
        a(f"v_lshl_add_u32 v130, v8, 4, {sT1}")
        a("v_lshrrev_b32 v8, 3, v0")
        a("v_lshl_add_u32 v130, v8, 11, v130")
        a(f"s_mov_b32 {sT3}, 0x4000")
        a(f"s_mov_b32 {sT4}, 0x8000")
        a(f"s_mov_b32 {sT5}, 0xc000")
        a(f"s_cmp_lg_u64 {sCAND}, 0")
        a(f"s_cselect_b32 s63, 1, {sKH}")

        def h4ld():
            a(f"buffer_load_dword v{VK}, v129, {WS}, 0 offen sc1")
            for i in range(4):
                a(f"buffer_load_dwordx4 v[{SEG+4*i}:{SEG+4*i+3}], v130, {WS}, {['0', sT3, sT4, sT5][i]} offen sc1")
        a("s_cmp_eq_u32 s63, 0")
        a("s_cbranch_scc1 L_h4_skip1")
        h4ld()
        a("L_h4_skip1:")
        OP = 104
        for k in range(8):
            a(f"v_lshlrev_b32 v{16+2*k}, 16, v{HN+k}")
            a(f"v_and_b32 v{17+2*k}, 0xffff0000, v{HN+k}")
        for k in range(8):
            a(f"v_pk_add_f32 v[{16+2*k}:{17+2*k}], v[{16+2*k}:{17+2*k}], v[{HF+2*k}:{HF+2*k+1}]")
        for k in range(8):
            a(f"v_cvt_pk_bf16_f32 v{OP+k}, v{16+2*k}, v{17+2*k}")
        for b in (0, 4):
            a(f"v_permlane16_swap_b32 v{OP+b}, v{OP+b+2}")
            a(f"v_permlane16_swap_b32 v{OP+b+1}, v{OP+b+3}")
        a(f"v_mov_b32 v9, {OOB}")
        a(f"v_cndmask_b32 v8, v5, v9, {sCAND}")
        a(f"buffer_store_dwordx4 v[{OP}:{OP+3}], v8, {OUT}, 0 offen")
        a(f"buffer_store_dwordx4 v[{OP+4}:{OP+7}], v8, {OUT}, 0 offen offset:64")
        self.stamp(15)
        a("s_cmp_eq_u32 s63, 0")
        a("s_cbranch_scc1 L_fin")
        a(f"s_cmp_eq_u64 {sCAND}, 0")
        a("s_cbranch_scc1 L_nostash")
        a(f"v_lshlrev_b32 v8, 3, v1")
        a(f"v_add_u32 v8, {L_STASH}, v8")
        a("v_add_u32 v9, 512, v8")
        a("v_cndmask_b32 v8, v8, v9, s[6:7]")
        self.rbf(9, RV)
        a(f"s_mov_b64 exec, {sCAND}")
        for ct in range(4):
            a(f"ds_write_b64 v8, v[{H+2*ct}:{H+2*ct+1}] offset:{ct*32}")
            a(f"ds_write_b64 v8, v[{HN+2*ct}:{HN+2*ct+1}] offset:{128 + ct*32}")
        a("ds_write_b32 v8, v9 offset:256")
        a("s_mov_b64 exec, -1")
        a("L_nostash:")
        a("s_branch L_h4_chk")
        a("L_h4:")
        h4ld()
        a("L_h4_chk:")
        a("s_waitcnt vmcnt(0)")
        a(f"v_max3_u32 v8, v{VK}, v{SEG+1}, v{SEG+3}")
        for i in range(1, 4):
            a(f"v_max3_u32 v8, v8, v{SEG+4*i+1}, v{SEG+4*i+3}")
        a("v_cmp_eq_u32 vcc, -1, v8")
        self.spin_check("L_h4")
        self.stamp(16)
        a(f"s_lshl_b32 {sT2}, {sLW}, 12")
        a(f"s_add_u32 {sT2}, {sT2}, {L_SEG}")
        a(f"s_cmp_eq_u32 {sKH}, 0")
        a("s_cbranch_scc1 L_noseg")
        a(f"v_lshl_add_u32 v8, v0, 4, {sT2}")
        for i in range(4):
            a(f"ds_write_b128 v8, v[{SEG+4*i}:{SEG+4*i+3}] offset:{i*1024}")
        a("L_noseg:")
        a(f"v_mov_b32 v{R}, v{VK}")
        a(f"v_mov_b32 v{R+1}, 0")
        self.top2(R, R + 1, R + 2, R + 3, 2, sG1, sG2)
        a(f"s_cmp_eq_u64 {sCAND}, 0")
        a("s_cbranch_scc1 L_nolost")
        a(f"v_cmp_ne_u32 s[4:5], {sG1}, v{KEY}")
        a(f"v_cmp_ne_u32 s[6:7], {sG2}, v{KEY}")
        a("s_and_b64 s[4:5], s[4:5], s[6:7]")
        a(f"s_and_b64 s[4:5], s[4:5], {sCAND}")
        a(f"v_mov_b32 v9, {OOB}")
        a("v_cndmask_b32 v8, v9, v5, s[4:5]")
        a(f"buffer_store_dwordx4 v[{OP}:{OP+3}], v8, {OUT}, 0 offen")
        a(f"buffer_store_dwordx4 v[{OP+4}:{OP+7}], v8, {OUT}, 0 offen offset:64")
        a("L_nolost:")
        a(f"s_cmp_lg_u32 {sKH}, 0")
        a("s_cbranch_scc1 L_moe")
        a("s_barrier")
        a("s_barrier")
        a("s_branch L_final")

        a("L_moe:")
        self.moe_ld(7)
        a(f"v_cmp_eq_u32 vcc, {sG1}, v{VK}")
        a(f"s_ff1_i32_b64 {sT0}, vcc")
        a(f"v_cmp_eq_u32 vcc, {sG2}, v{VK}")
        a(f"s_ff1_i32_b64 {sT1}, vcc")
        a(f"s_lshl_b32 {sT0}, {sT0}, 7")
        a(f"s_lshl_b32 {sT1}, {sT1}, 7")
        a("v_bfe_u32 v8, v0, 3, 1")
        a("v_cmp_eq_u32 vcc, 1, v8")
        a(f"v_mov_b32 v9, {sT0}")
        a(f"v_mov_b32 v10, {sT1}")
        a("v_cndmask_b32 v9, v9, v10, vcc")
        a(f"v_lshl_add_u32 v10, v1, 5, {sT2}")
        a("v_add_u32 v9, v9, v10")
        a("s_waitcnt lgkmcnt(0)")
        XV, SEL, AF, D = 64, 72, 80, 88
        a(f"ds_read_b128 v[{XV}:{XV+3}], v9")
        a(f"ds_read_b128 v[{XV+4}:{XV+7}], v9 offset:16")
        a("v_and_b32 v10, 1, v0")
        a("v_cmp_eq_u32 vcc, 1, v10")
        a("v_mov_b32 v10, 0x0c0c0100")
        a("v_mov_b32 v11, 0x01000c0c")
        a("v_cndmask_b32 v16, v10, v11, vcc")
        a("v_mov_b32 v10, 0x0c0c0302")
        a("v_mov_b32 v11, 0x03020c0c")
        a("v_cndmask_b32 v17, v10, v11, vcc")
        a("v_bfe_u32 v10, v0, 1, 2")
        a("v_mov_b32 v11, 0x0c0c0c0c")
        for d in range(4):
            a(f"v_cmp_eq_u32 vcc, {d}, v10")
            a(f"v_cndmask_b32 v{SEL+d}, v11, v16, vcc")
            a(f"v_cndmask_b32 v{SEL+4+d}, v11, v17, vcc")

        def chain(n, wbase):
            for s in range(n):
                f = AF + 4 * (s & 1)
                for d in range(4):
                    a(f"v_perm_b32 v{f+d}, v{XV+(s>>1)}, v{XV+(s>>1)}, v{SEL+4*(s&1)+d}")
                a(f"v_mfma_f32_16x16x32_bf16 v[{D}:{D+3}], v[{f}:{f+3}], v[{wbase+4*s}:{wbase+4*s+3}], " + ("0" if s == 0 else f"v[{D}:{D+3}]"))

        def reduce_publish(lred, lab):
            a(f"ds_write_b128 v18, v[{D}:{D+3}] offset:{lred - L_RED1}")
            a("s_waitcnt lgkmcnt(0)")
            a("s_barrier")
            a(f"s_cmp_lg_u32 {sLW}, 0")
            a(f"s_cbranch_scc1 {lab}")
            for k in range(1, 4):
                a(f"ds_read_b128 v[{16+4*k}:{19+4*k}], v18 offset:{lred - L_RED1 + k*1024}")
            a("s_waitcnt lgkmcnt(0)")
            for k in range(0, 4, 2):
                a(f"v_pk_add_f32 v[{D+k}:{D+k+1}], v[{D+k}:{D+k+1}], v[{20+k}:{21+k}]")
                a(f"v_pk_add_f32 v[{24+k}:{25+k}], v[{24+k}:{25+k}], v[{28+k}:{29+k}]")
                a(f"v_pk_add_f32 v[{D+k}:{D+k+1}], v[{D+k}:{D+k+1}], v[{24+k}:{25+k}]")
            a(f"buffer_store_dwordx4 v[{D}:{D+3}], v19, {WS}, 0 offen sc1")
            a(f"{lab}:")
        a(f"s_lshl_b32 {sT0}, {sLW}, 10")
        a(f"s_add_u32 {sT0}, {sT0}, {L_RED1}")
        a(f"v_lshl_add_u32 v18, v0, 4, {sT0}")
        a(f"s_and_b32 {sT0}, s2, 1")
        a(f"s_lshl_b32 {sT0}, {sT0}, 2")
        a(f"s_bfe_u32 {sT1}, s2, 0x20001")
        a(f"s_add_u32 {sT0}, {sT0}, {sT1}")
        a(f"s_mul_i32 {sT0}, {sT0}, 28672")
        a(f"s_lshl_b32 {sT1}, {sIDX}, 9")
        a(f"s_add_u32 {sT0}, {sT0}, {sT1}")
        a(f"s_add_u32 {sT0}, {sT0}, {WS_GU}")
        a("s_cmp_ge_u32 s2, 224")
        a(f"s_cselect_b32 {sT0}, {OOB}, {sT0}")
        a(f"v_lshl_add_u32 v19, v2, 5, {sT0}")
        a("v_and_b32 v10, 1, v1")
        a("v_lshl_add_u32 v19, v10, 4, v19")
        a("v_lshrrev_b32 v11, 1, v1")
        a("v_mul_u32_u24 v16, 14336, v11")
        a("v_add_u32 v19, v19, v16")
        a("s_waitcnt lgkmcnt(0)")
        chain(16, 164)
        reduce_publish(L_RED1, "L_gu_done")
        self.stamp(17)
        a(f"s_mul_i32 {sT0}, {sIDX}, 112")
        a(f"s_mul_i32 {sT1}, {sLW}, 28")
        a(f"s_add_u32 {sT0}, {sT0}, {sT1}")
        a("v_bfe_u32 v16, v0, 3, 2")
        a("v_mul_u32_u24 v16, 7, v16")
        a("v_and_b32 v17, 7, v0")
        a("v_min_u32 v17, 6, v17")
        a(f"v_add3_u32 v16, v16, v17, {sT0}")
        a("v_lshrrev_b32 v17, 5, v0")
        a("v_mul_u32_u24 v17, 14336, v17")
        a("v_lshl_add_u32 v16, v16, 2, v17")
        a(f"v_add_u32 v16, {WS_GU}, v16")
        a(f"s_lshl_b32 {sT0}, {sIDX}, 13")
        a(f"s_lshl_b32 {sT1}, {sXCD}, 9")
        a(f"s_add_u32 {sT0}, {sT0}, {sT1}")
        a(f"s_add_u32 {sT0}, {sT0}, {WS_DP}")
        a(f"v_lshl_add_u32 v9, v2, 5, {sT0}")
        a("v_lshl_add_u32 v9, v10, 4, v9")
        a("v_lshl_add_u32 v9, v11, 12, v9")
        a(f"s_lshl_b32 {sT0}, {sLW}, 7")
        a(f"s_add_u32 {sT0}, {sT0}, {L_AD}")
        a(f"v_lshl_add_u32 v10, v0, 1, {sT0}")
        a(f"v_lshl_add_u32 v11, v8, 6, {sT0}")
        a("v_lshl_add_u32 v11, v1, 4, v11")
        GV = 24
        a("L_h5:")
        for k in range(8):
            a(f"s_mov_b32 {sT4}, {k*28672}")
            a(f"buffer_load_dword v{GV+k}, v16, {WS}, {sT4} offen sc1")
        a("s_waitcnt vmcnt(0)")
        a(f"v_max3_u32 v17, v{GV}, v{GV+1}, v{GV+2}")
        a(f"v_max3_u32 v17, v17, v{GV+3}, v{GV+4}")
        a(f"v_max3_u32 v17, v17, v{GV+5}, v{GV+6}")
        a(f"v_max_u32 v17, v17, v{GV+7}")
        a("v_cmp_eq_u32 vcc, -1, v17")
        self.spin_check("L_h5")
        self.stamp(18)
        a("v_mov_b32 v19, v9")
        a(f"v_add_f32 v{GV}, v{GV}, v{GV+1}")
        a(f"v_add_f32 v{GV+2}, v{GV+2}, v{GV+3}")
        a(f"v_add_f32 v{GV+4}, v{GV+4}, v{GV+5}")
        a(f"v_add_f32 v{GV+6}, v{GV+6}, v{GV+7}")
        a(f"v_add_f32 v{GV}, v{GV}, v{GV+2}")
        a(f"v_add_f32 v{GV+4}, v{GV+4}, v{GV+6}")
        a(f"v_cvt_pk_bf16_f32 v{GV+1}, v{GV}, v{GV+4}")
        a(f"v_lshlrev_b32 v{GV}, 16, v{GV+1}")
        a(f"v_and_b32 v{GV+4}, 0xffff0000, v{GV+1}")
        a(f"v_mul_f32 v{GV+1}, 0xbfb8aa3b, v{GV}")
        a(f"v_exp_f32 v{GV+1}, v{GV+1}")
        a(f"v_add_f32 v{GV+1}, 1.0, v{GV+1}")
        a(f"v_rcp_f32 v{GV+1}, v{GV+1}")
        a(f"v_mul_f32 v{GV}, v{GV}, v{GV+1}")
        self.rbf(GV, GV)
        a(f"v_mul_f32 v{GV}, v{GV}, v{GV+4}")
        a(f"v_cvt_pk_bf16_f32 v{GV}, v{GV}, v{GV}")
        a(f"ds_write_b16 v10, v{GV}")
        a("s_waitcnt lgkmcnt(0)")
        a(f"ds_read_b128 v[{XV}:{XV+3}], v11")
        a("s_waitcnt lgkmcnt(0)")
        chain(7, 228)
        reduce_publish(L_RED2, "L_dn_done")
        self.stamp(19)

        a("L_final:")
        a(f"s_cmp_eq_u64 {sCAND}, 0")
        a("s_cbranch_scc1 L_fin")
        a("s_mov_b32 s63, 0")
        a("L_fin_loop:")
        a(f"v_cmp_eq_u32 vcc, {sG1}, v{KEY}")
        a("s_cbranch_vccz L_fin_next")
        a(f"s_cmp_eq_u32 {sG1}, {sK1}")
        a(f"s_cselect_b32 {sT0}, 0, 512")
        a(f"s_add_u32 {sT0}, {sT0}, {L_STASH}")
        a(f"v_lshl_add_u32 v8, v2, 3, {sT0}")
        a(f"v_mov_b32 v9, {sT0}")
        a("ds_read_b64 v[56:57], v8")
        a("ds_read_b64 v[58:59], v8 offset:128")
        a("ds_read_b32 v60, v9 offset:256")
        a(f"s_lshl_b32 {sT0}, s63, 12")
        a(f"s_lshl_b32 {sT1}, {sCB}, 8")
        a(f"s_add_u32 {sT0}, {sT0}, {sT1}")
        a(f"s_add_u32 {sT0}, {sT0}, {WS_DP}")
        a(f"v_lshl_add_u32 v10, v2, 4, {sT0}")
        a("v_lshl_add_u32 v10, v1, 13, v10")
        a(f"s_and_b32 {sT0}, {sG1}, 0x7ff")
        a(f"s_sub_u32 {sT0}, 2047, {sT0}")
        a(f"s_lshl_b32 {sT0}, {sT0}, 11")
        a(f"s_lshl_b32 {sT1}, {sCB}, 7")
        a(f"s_add_u32 {sT0}, {sT0}, {sT1}")
        a(f"v_lshl_add_u32 v11, v2, 3, {sT0}")
        a("v_cmp_eq_u32 vcc, 0, v1")
        a(f"v_mov_b32 v9, {OOB}")
        a("v_cndmask_b32 v11, v9, v11, vcc")
        a("s_waitcnt lgkmcnt(0)")
        a("v_mul_f32 v60, 0xbfb8aa3b, v60")
        a("v_exp_f32 v60, v60")
        a("v_add_f32 v60, 1.0, v60")
        a("v_rcp_f32 v60, v60")
        self.rbf(60, 60)
        for k in range(2):
            a(f"v_lshlrev_b32 v{64+2*k}, 16, v{56+k}")
            a(f"v_and_b32 v{65+2*k}, 0xffff0000, v{56+k}")
            a(f"v_lshlrev_b32 v{68+2*k}, 16, v{58+k}")
            a(f"v_and_b32 v{69+2*k}, 0xffff0000, v{58+k}")
        a("L_h6:")
        for i in range(8):
            a(f"s_mov_b32 {sT4}, {i*32768}")
            a(f"buffer_load_dwordx4 v[{112+4*i}:{115+4*i}], v10, {WS}, {sT4} offen sc1")
        a("s_waitcnt vmcnt(0)")
        a("v_max3_u32 v8, v115, v119, v123")
        a("v_max3_u32 v8, v8, v127, v131")
        a("v_max3_u32 v8, v8, v135, v139")
        a("v_max_u32 v8, v8, v143")
        a("v_cmp_eq_u32 vcc, -1, v8")
        self.spin_check("L_h6")
        for st in (16, 8, 4):
            for k in range(0, st, 2):
                a(f"v_pk_add_f32 v[{112+k}:{113+k}], v[{112+k}:{113+k}], v[{112+st+k}:{113+st+k}]")
        self.sum_rows([112, 113, 114, 115], 116)

        def rnd4():
            for k in range(2):
                a(f"v_cvt_pk_bf16_f32 v{116+k}, v{112+2*k}, v{113+2*k}")
            for k in range(2):
                a(f"v_lshlrev_b32 v{112+2*k}, 16, v{116+k}")
                a(f"v_and_b32 v{113+2*k}, 0xffff0000, v{116+k}")
        rnd4()
        for k in range(0, 4, 2):
            a(f"v_pk_mul_f32 v[{112+k}:{113+k}], v[{112+k}:{113+k}], v[60:61] op_sel_hi:[1,0]")
        rnd4()
        for k in range(0, 4, 2):
            a(f"v_pk_add_f32 v[{112+k}:{113+k}], v[{112+k}:{113+k}], v[{68+k}:{69+k}]")
        rnd4()
        for k in range(0, 4, 2):
            a(f"v_pk_add_f32 v[{112+k}:{113+k}], v[{112+k}:{113+k}], v[{64+k}:{65+k}]")
        for k in range(2):
            a(f"v_cvt_pk_bf16_f32 v{116+k}, v{112+2*k}, v{113+2*k}")
        a(f"buffer_store_dwordx2 v[116:117], v11, {OUT}, 0 offen")
        a("L_fin_next:")
        a(f"s_mov_b32 {sG1}, {sG2}")
        a("s_add_u32 s63, s63, 1")
        a("s_cmp_lt_u32 s63, 2")
        a("s_cbranch_scc1 L_fin_loop")
        a("L_fin:")
        self.stamp(20)
        self.stamp_out()
        a("L_end:")
        a("s_endpgm")

    def build(self):
        self.prologue()
        self.loader()
        self.compute()
        self.phase_b()
        lines, added = hazard.process(self.a.lines)
        bad = hazard.check_edges(lines)
        if bad:
            for b in bad:
                print("EDGE HAZARD:", b, file=sys.stderr)
        body = "\n".join(lines) + "\n"
        L = NAME + "_kernel"
        return wrap([f"grid=(256,1,1) block=(512,1,1) lds={LDS_BYTES}"], body, [kd(L, 256, 102)]), added, bad


if __name__ == "__main__":
    out = f"/code/{NAME}.s"
    opt = {}
    for x in sys.argv[1:]:
        if "=" in x:
            k, v = x.split("=")
            opt[k] = int(v)
        else:
            out = x
    txt, added, bad = Gen(**opt).build()
    open(out, "w").write(txt)
    print(f"wrote {out}: {len(txt)} bytes, {added} nops added, {len(bad)} edge hazards")
```

```python
import sys
sys.path.insert(0, "tools")
from asmlib import *
import hazard

STAGE = 40960
BOFF = 16384
NBUF = 3
L_WO = 0
L_MISC = 131072
L_NM, L_RS, L_RSL, L_C = L_MISC, L_MISC + 512, L_MISC + 1024, L_MISC + 1536
L_F15 = L_MISC + 4096
L_FX = L_F15 + 16
L_XCH = 139264
L_XKV = L_XCH
L_KVF = L_XCH + 12288
L_KEYS = 65536
L_SEG = 69632
L_RED1 = 90112
L_RED2 = 94208
L_STASH = 98304
L_AD = 100352
LDS_BYTES = 163840


def l_wo(h):
    return L_WO + 4096 * h


WS_STAT = 0x40000
WS_CS = 0x10000
WS_ARENA = 0x100000
WS_O = 0x100000
WS_KV = 0x500000
WS_S2 = 0x600000
WS_DP = 0x680000
WS_GU = 0x6C0000
WS_Z = 0x6F8000
WS_CAND = 0x708000
WS_KEY = 0x718000
WS_DBG = 0x800000
WS_EPOCH = 0x80000
OOB = 0x80000000
SPIN = 1 << 16

X, WQ, WS, WO, OUT, DBG, GU, DN, WR = (f"s[{b}:{b+3}]" for b in (8, 12, 16, 20, 24, 28, 32, 36, 40))
CLR = WQ
sW, sXCD, sIDX, sRB, sHP, sLW, sTH, sHH, sRBB, sCB = "s3", "s44", "s45", "s46", "s47", "s48", "s49", "s50", "s51", "s52"
sEPS = "s54"
sSPIN = "s56"
sW1 = "s57"
sK1, sK2, sG1, sG2 = "s58", "s59", "s60", "s61"
sT0, sT1, sT2, sT3, sT4, sT5 = "s86", "s87", "s88", "s89", "s90", "s91"
s4K, s8K, s12K = "s92", "s93", "s94"
sONES = "s95"
sCAND = "s[96:97]"
sM1, sM2, sM3 = "s[4:5]", "s[6:7]", "s[98:99]"
sKS = "s64"
sTAG = "s61"
VST = 15

DPPM = "row_mask:0xf bank_mask:0xf"


class Gen:
    def __init__(self, stamps=False, **opt):
        self.a = Asm()
        self.stamps = stamps
        self.opt = opt
        self.vm = []

    def nt(self, bit):
        return " nt" if self.opt.get("nt", 0) & bit else ""

    def vwait(self, *tags):
        last = max(i for i, t in enumerate(self.vm) if t in tags)
        n = len(self.vm) - 1 - last
        assert n < 64
        self.a(f"s_waitcnt vmcnt({n})")

    DBGMAP = [0, 1, 2, 3, 4, 5, 6, 7, 10, 11, 13, 16, 18, 20]

    def stamp(self, i):
        amp = self.opt.get("amp")
        if amp is not None and i in (0, amp):
            self.a("s_memrealtime s[100:101]")
            self.a("s_waitcnt lgkmcnt(0)")
            if i == 0:
                self.a("s_mov_b32 s70, s100")
                self.a("s_mov_b32 s71, s100")
            else:
                self.a("s_mov_b32 s71, s100")
        if not self.stamps:
            return
        a = self.a
        if self.stamps >= 2 and i not in self.DBGMAP:
            return
        a("s_memrealtime s[100:101]")
        a("s_waitcnt lgkmcnt(0)")
        if self.stamps >= 2:
            if i == 0:
                a("s_not_b32 s101, s100")
                a(f"v_writelane_b32 v{VST}, s101, 1")
            if self.stamps == 3:
                a("s_not_b32 s100, s100")
            a(f"v_writelane_b32 v{VST}, s100, {2 + self.DBGMAP.index(i)}")
        else:
            a(f"v_writelane_b32 v{VST}, s100, {i}")
            if i in (1, 5, 10, 11):
                a("s_memtime s[100:101]")
                a("s_waitcnt lgkmcnt(0)")
                a(f"v_writelane_b32 v{VST}, s100, {50 + (1, 5, 10, 11).index(i)}")

    def stamp_out(self):
        if self.opt.get("amp") is not None:
            a = self.a
            a(f"s_cmp_lg_u32 {sW}, {self.opt.get('dbgw', 4)}")
            a("s_cbranch_scc1 L_end")
            a("s_sub_u32 s71, s71, s70")
            a("s_lshl_b32 s71, s71, 1")
            a("s_memrealtime s[100:101]")
            a("s_waitcnt lgkmcnt(0)")
            a("s_mov_b32 s70, s100")
            a("L_amp:")
            a("s_memrealtime s[100:101]")
            a("s_waitcnt lgkmcnt(0)")
            a("s_sub_u32 s100, s100, s70")
            a("s_cmp_lt_u32 s100, s71")
            a("s_cbranch_scc1 L_amp")
        if not self.stamps:
            return
        a = self.a
        if self.stamps >= 2:
            a(f"s_cmp_lg_u32 {sW}, {self.opt.get('dbgw', 4)}")
            a("s_cbranch_scc1 L_end")
            a("v_mbcnt_lo_u32_b32 v14, -1, 0")
            a("v_mbcnt_hi_u32_b32 v14, -1, v14")
            a("v_cmp_gt_u32 vcc, 16, v14")
            a("v_lshlrev_b32 v14, 2, v14")
            a(f"v_mov_b32 v13, {OOB}")
            a("v_cndmask_b32 v14, v13, v14, vcc")
            a(f"buffer_atomic_umax v{VST}, v14, {DBG}, 0 offen sc1")
            return
        a(f"s_lshl_b32 {sT0}, s2, 3")
        a(f"s_add_u32 {sT0}, {sT0}, {sW}")
        a(f"s_lshl_b32 {sT0}, {sT0}, 8")
        a(f"s_add_u32 {sT0}, {sT0}, {WS_DBG}")
        a("v_mbcnt_lo_u32_b32 v14, -1, 0")
        a("v_mbcnt_hi_u32_b32 v14, -1, v14")
        a(f"v_lshl_add_u32 v14, v14, 2, {sT0}")
        a(f"buffer_store_dword v{VST}, v14, {WS}, 0 offen")

    def rbf(self, d, s):
        self.a(f"v_cvt_pk_bf16_f32 v{d}, v{s}, v{s}")
        self.a(f"v_lshlrev_b32 v{d}, 16, v{d}")

    def sum_rows(self, regs, tmp):
        a = self.a
        for sw in ("v_permlane32_swap_b32", "v_permlane16_swap_b32"):
            for k, r in enumerate(regs):
                a(f"v_mov_b32 v{tmp+k}, v{r}")
            for k, r in enumerate(regs):
                a(f"{sw} v{r}, v{tmp+k}")
            for k, r in enumerate(regs):
                a(f"v_add_f32 v{r}, v{r}, v{tmp+k}")

    def spin_check(self, loop):
        a = self.a
        done = a.label("L_ok")
        a(f"s_cbranch_vccz {done}")
        a(f"s_sub_u32 {sSPIN}, {sSPIN}, 1")
        a(f"s_cbranch_scc0 {loop}")
        a(f"s_mov_b32 {sSPIN}, 0")
        a(f"{done}:")

    def top2(self, m1, m2, t1, t2, rows, o1, o2):
        a = self.a
        for sh in (8, 4, 2, 1):
            a(f"v_mov_b32_dpp v{t1}, v{m1} row_ror:{sh} {DPPM}")
            a(f"v_max_u32_dpp v{t2}, v{m2}, v{m2} row_ror:{sh} {DPPM}")
            a(f"v_med3_u32 v{m2}, v{m1}, v{t1}, v{t2}")
            a(f"v_max_u32 v{m1}, v{m1}, v{t1}")
        a(f"v_readlane_b32 {o1}, v{m1}, 0")
        a(f"v_readlane_b32 {o2}, v{m2}, 0")
        for r in range(1, rows):
            a(f"v_readlane_b32 {sT0}, v{m1}, {16*r}")
            a(f"v_readlane_b32 {sT1}, v{m2}, {16*r}")
            a(f"s_max_u32 {o2}, {o2}, {sT1}")
            a(f"s_min_u32 {sT1}, {o1}, {sT0}")
            a(f"s_max_u32 {o1}, {o1}, {sT0}")
            a(f"s_max_u32 {o2}, {o2}, {sT1}")

    def prologue(self):
        a = self.a
        kernel_begin(a, NAME + "_kernel")
        a("s_cmp_ge_u32 s2, 256")
        a("s_cbranch_scc1 L_end")
        a("s_load_dwordx16 s[64:79], s[0:1], 0")
        a("s_load_dwordx4 s[80:83], s[0:1], 64")
        a("s_load_dwordx2 s[84:85], s[0:1], 80")
        a("v_lshrrev_b32 v1, 6, v0")
        a("v_and_b32 v0, 63, v0")
        a(f"v_readfirstlane_b32 {sW}, v1")
        if self.stamps:
            a(f"v_mov_b32 v{VST}, 0")
        a(f"s_and_b32 {sXCD}, s2, 7")
        a(f"s_lshr_b32 {sIDX}, s2, 3")
        a(f"s_and_b32 {sRB}, {sXCD}, 1")
        a(f"s_lshl_b32 {sRB}, {sRB}, 3")
        a(f"s_and_b32 {sT0}, {sIDX}, 7")
        a(f"s_add_u32 {sRB}, {sRB}, {sT0}")
        a(f"s_lshr_b32 {sHP}, {sXCD}, 1")
        a(f"s_lshl_b32 {sHP}, {sHP}, 2")
        a(f"s_lshr_b32 {sT0}, {sIDX}, 3")
        a(f"s_add_u32 {sHP}, {sHP}, {sT0}")
        if self.opt.get("remap", 1):
            a(f"s_mov_b32 {sRBB}, {sHP}")
            a(f"s_mov_b32 {sCB}, {sRB}")
        else:
            a(f"s_lshl_b32 {sRBB}, {sXCD}, 1")
            a(f"s_lshr_b32 {sT0}, {sIDX}, 4")
            a(f"s_add_u32 {sRBB}, {sRBB}, {sT0}")
            a(f"s_and_b32 {sCB}, {sIDX}, 15")
        a(f"s_and_b32 {sLW}, {sW}, 3")
        a(f"s_and_b32 {sTH}, {sW}, 1")
        a(f"s_bfe_u32 {sHH}, {sW}, 0x10001")
        a(f"s_mov_b32 {sSPIN}, {SPIN}")
        a(f"s_mov_b32 {sONES}, 0x3f803f80")
        a(f"s_movk_i32 {s4K}, 0x1000")
        a(f"s_movk_i32 {s8K}, 0x2000")
        a(f"s_movk_i32 {s12K}, 0x3000")
        a(f"s_cmp_lt_u32 {sW}, 4")
        a("s_cbranch_scc1 L_comp")

    def srds(self, first):
        a = self.a
        tab = {"X": (8, 64, 2048 * 2048), "WQ": (12, 66, 1024 * 6144), "WS": (16, 84, 0x10000000),
               "WO": (20, 68, 1024 * 2048), "OUT": (24, 80, 2048 * 2048), "DBG": (28, 82, 256),
               "DN": (36, 78, 3584 * 2048), "WR": (40, 72, 2048)}
        for k in first:
            if k == "GU":
                a("s_bitcmp1_b32 s2, 0")
                a("s_cselect_b32 s32, s76, s74")
                a("s_cselect_b32 s33, s77, s75")
                a("s_and_b32 s33, s33, 0xffff")
                a(f"s_mov_b32 s34, {1024*7168}")
                a("s_mov_b32 s35, 0x20000")
            else:
                srd(a, *tab[k])

    def stage_dma(self, t):
        a = self.a
        buf = t % NBUF
        self.vm += [f"S{t}"] * 10
        if self.opt.get("diag", 0) & 2 and t >= 2:
            return
        a(f"s_add_u32 m0, s53, {buf*STAGE}")
        a(f"s_lshl_b32 {sT4}, {sKS}, 7")
        a(f"s_add_u32 {sT4}, {sT4}, s63")
        for p in range(4):
            a(f"buffer_load_dwordx4 v{2+p}, {X}, {sT4} offen offset:{p*1024}{self.nt(1)} lds")
        a(f"s_mul_i32 {sT5}, {sKS}, {64*6144}")
        a(f"s_add_u32 {sKS}, {sKS}, 1")
        a(f"s_and_b32 {sKS}, {sKS}, 15")
        for m in range(3):
            a(f"s_add_u32 m0, s62, {buf*STAGE + m*8192}")
            for pp in range(2):
                a(f"buffer_load_dwordx4 v{6+m*2+pp}, {WQ}, {sT5} offen offset:{pp*1024}{self.nt(2)} lds")

    def wo_dma(self, heads):
        a = self.a
        for h in heads:
            self.vm.append("WO")
            a(f"s_add_u32 m0, {sT3}, {l_wo(h)}")
            a(f"s_mov_b32 {sT4}, {h*65536}")
            a(f"buffer_load_dwordx4 v12, {WO}, {sT4} offen{self.nt(4)} lds")

    def moe_ld(self, n):
        for _ in range(n):
            if self.moe:
                d, v, srd_, off = self.moe.pop(0)
                mx = self.opt.get("moex", 0)
                if mx == 1:
                    self.a(f"v_mov_b32 v27, {OOB}")
                    v = 27
                if mx == 2:
                    v, srd_, off = 29, X, 0
                self.a(f"s_mov_b32 {sT4}, {off}")
                self.a(f"buffer_load_dwordx4 v[{d}:{d+3}], v{v}, {srd_}, {sT4} offen" + {3: " nt", 4: " sc1", 5: " sc0 sc1 nt"}.get(mx, ""))
                self.vm.append("MOE")

    def loader(self):
        a = self.a
        a("v_lshrrev_b32 v20, 3, v0")
        a("v_and_b32 v21, 7, v0")
        a("v_lshrrev_b32 v22, 4, v0")
        a("v_xor_b32 v23, v21, v22")
        a("v_xor_b32 v24, 4, v23")
        a(f"s_lshl_b32 {sT0}, {sLW}, 5")
        a(f"v_add_u32 v25, {sT0}, v20")
        a("v_lshlrev_b32 v25, 11, v25")
        for p in range(4):
            a(f"v_lshl_add_u32 v{2+p}, v{23 + (p & 1)}, 4, v25")
            if p:
                a(f"v_add_u32 v{2+p}, {p*16384 - p*1024}, v{2+p}")
        a(f"s_lshl_b32 {sT0}, {sLW}, 4")
        a(f"v_add_u32 v25, {sT0}, v20")
        a("v_mul_u32_u24 v25, 6144, v25")
        a(f"s_lshl_b32 {sT0}, {sHP}, 7")
        a(f"v_add_u32 v25, {sT0}, v25")
        a("v_bfe_u32 v26, v0, 4, 1")
        a("v_lshlrev_b32 v26, 1, v26")
        a("v_xor_b32 v26, v26, v21")
        a("v_xor_b32 v27, 4, v26")
        for m in range(3):
            for pp in range(2):
                d = 6 + m * 2 + pp
                a(f"v_lshl_add_u32 v{d}, v{26+pp}, 4, v25")
                if m or pp:
                    a(f"v_add_u32 v{d}, {m*2048 + pp*8*6144 - pp*1024}, v{d}")
        a(f"s_lshl_b32 s63, {sRB}, 18")
        a(f"s_lshl_b32 s53, {sLW}, 12")
        a(f"s_lshl_b32 s62, {sLW}, 11")
        a(f"s_add_u32 s62, s62, {BOFF}")
        pf = self.opt.get("pf", 3)
        if pf:
            a(f"s_lshl_b32 {sT0}, {sIDX}, 2")
            a(f"s_add_u32 {sT0}, {sT0}, {sLW}")
            a(f"s_mul_i32 {sT1}, {sT0}, {6*2048}")
            a(f"s_and_b32 {sT2}, {sHP}, 12")
            a(f"s_lshl_b32 {sT2}, {sT2}, 7")
            a(f"s_add_u32 {sT1}, {sT1}, {sT2}")
            a(f"s_add_u32 {sT1}, {sT1}, 384")
            a(f"s_bitcmp1_b32 {sHP}, 2")
            a(f"s_cselect_b32 {sT1}, {OOB}, {sT1}")
            a(f"v_lshl_add_u32 v37, v0, 11, {sT1}")
            a(f"v_mov_b32 v24, {OOB}")
            a("v_cmp_gt_u32 vcc, 6, v0")
            a("v_cndmask_b32 v37, v24, v37, vcc")
            a(f"s_lshl_b32 {sT0}, {sT0}, 14")
            a(f"s_and_b32 {sT2}, {sRB}, 8")
            a(f"s_lshl_b32 {sT2}, {sT2}, 7")
            a(f"s_add_u32 {sT0}, {sT0}, {sT2}")
            a(f"s_add_u32 {sT0}, {sT0}, 384")
            a(f"v_lshl_add_u32 v38, v0, 11, {sT0}")
            a("v_cmp_gt_u32 vcc, 8, v0")
            a("v_cndmask_b32 v38, v24, v38, vcc")
        a("s_waitcnt lgkmcnt(0)")
        self.srds(["X", "WQ"])
        a(f"s_and_b32 {sT0}, {sHP}, 12")
        a(f"s_and_b32 {sT1}, {sRB}, 8")
        a(f"s_add_u32 {sKS}, {sT0}, {sT1}")
        a(f"s_and_b32 {sKS}, {sKS}, 15")
        self.stamp(0)
        a(f"s_load_dword {sTAG}, s[84:85], {WS_EPOCH}")
        if self.opt.get("warm"):
            for t in range(16):
                self.stage_dma(t)
                a("s_waitcnt vmcnt(20)")
            a("s_waitcnt vmcnt(0)")
            self.vm = []

        def pfw(j):
            if pf & 1:
                a(f"s_lshr_b32 {sT4}, s67, 2")
                if j:
                    a(f"s_add_u32 {sT4}, {sT4}, {j}")
                    a(f"s_and_b32 {sT4}, {sT4}, 3")
                a(f"s_mul_i32 {sT4}, {sT4}, {768*2048}")
                a(f"buffer_load_dword v39, v37, {WQ}, {sT4} offen")
                self.vm.append("PF")
        a(f"s_mov_b32 s67, {sKS}")
        pfw(0)
        self.stage_dma(0)
        self.srds(["WS", "WO", "OUT", "DBG", "GU", "DN", "WR"])
        a("v_lshrrev_b32 v22, 4, v0")
        a("v_and_b32 v23, 15, v0")
        if self.opt.get("s1early", 1):
            self.stage_dma(1)
        if self.opt.get("fine"):
            self.stamp(40)
        a(f"s_and_b32 s65, {sIDX}, 7")
        a(f"s_lshr_b32 s66, {sIDX}, 3")
        a(f"s_mul_i32 {sT0}, s65, 11")
        a(f"s_lshr_b32 {sT0}, {sT0}, 5")
        a(f"s_mul_i32 {sT0}, {sT0}, 3")
        a(f"s_sub_u32 {sT0}, s65, {sT0}")
        a(f"s_mul_i32 {sT0}, {sT0}, {STAGE}")
        a(f"s_lshl_b32 {sT1}, {sLW}, 13")
        a(f"s_cmp_eq_u32 {sLW}, 3")
        a(f"s_cselect_b32 {sT1}, 0, {sT1}")
        a(f"s_add_u32 {sT0}, {sT0}, {sT1}")
        a(f"s_add_u32 {sT0}, {sT0}, {BOFF}")
        a(f"v_lshl_add_u32 v25, v20, 7, {sT0}")
        a("v_lshl_add_u32 v28, v26, 4, v25")
        a("v_lshl_add_u32 v29, v27, 4, v25")
        a("s_cmp_eq_u32 s66, 3")
        a(f"s_cselect_b32 {sT0}, 0, s66")
        a(f"s_mul_i32 {sT0}, {sT0}, {STAGE}")
        a(f"s_add_u32 {sT0}, {sT0}, s53")
        a(f"v_lshl_add_u32 v16, v0, 6, {sT0}")
        a("v_bfe_u32 v25, v0, 2, 2")
        a("v_lshl_add_u32 v16, v25, 4, v16")
        for i in range(1, 4):
            a(f"v_xor_b32 v{16+i}, {16*i}, v16")
        a(f"s_lshl_b32 {sT0}, {sRB}, 14")
        a(f"s_lshl_b32 {sT1}, {sLW}, 8")
        a(f"s_add_u32 {sT0}, {sT0}, {sT1}")
        a(f"s_add_u32 {sT0}, {sT0}, {WS_STAT}")
        a(f"v_lshl_add_u32 v33, v23, 4, {sT0}")
        a("v_lshl_add_u32 v33, v22, 10, v33")
        a(f"s_lshl_b32 {sT1}, {sHP}, 10")
        a(f"s_add_u32 {sT0}, {sT0}, {sT1}")
        a(f"v_lshl_add_u32 v13, v0, 2, {sT0}")
        a("v_and_b32 v25, 3, v0")
        a("v_cmp_eq_u32 vcc, 0, v25")
        a(f"v_mov_b32 v24, {OOB}")
        a("v_cndmask_b32 v13, v24, v13, vcc")
        a(f"s_mul_i32 {sT0}, {sHP}, {16*768}")
        a(f"s_add_u32 {sT0}, {sT0}, {WS_CS}")
        a(f"s_lshl_b32 {sT1}, {sLW}, 8")
        a(f"s_cmp_eq_u32 {sLW}, 3")
        a(f"s_cselect_b32 {sT1}, 0, {sT1}")
        a(f"s_cselect_b32 {sT2}, {OOB}, 0")
        a(f"s_add_u32 {sT0}, {sT0}, {sT1}")
        a(f"v_lshl_add_u32 v32, v23, 4, {sT0}")
        a("v_mul_u32_u24 v25, 768, v22")
        a("v_add_u32 v32, v32, v25")
        a(f"s_mul_i32 {sT1}, {sRB}, 768")
        a(f"s_add_u32 {sT0}, {sT0}, {sT1}")
        a(f"s_add_u32 {sT0}, {sT0}, {sT2}")
        a(f"v_lshl_add_u32 v34, v23, 5, {sT0}")
        a("v_lshl_add_u32 v34, v22, 4, v34")
        a("v_and_b32 v25, 0x28, v0")
        a("v_cmp_eq_u32 vcc, 0, v25")
        a("v_cndmask_b32 v34, v24, v34, vcc")
        a(f"s_bfe_u32 {sT0}, s2, 0x20001")
        a(f"s_lshl_b32 {sT0}, {sT0}, 2")
        a(f"s_add_u32 {sT0}, {sT0}, {sLW}")
        a(f"s_lshl_b32 {sT0}, {sT0}, 6")
        a(f"v_lshl_add_u32 v30, v22, 4, {sT0}")
        a("v_mul_u32_u24 v30, 7168, v30")
        a(f"s_lshl_b32 {sT0}, {sIDX}, 8")
        a("s_cmp_ge_u32 s2, 224")
        a(f"s_cselect_b32 {sT0}, {OOB}, {sT0}")
        a(f"v_lshl_add_u32 v24, v23, 4, {sT0}")
        a("v_add_u32 v30, v30, v24")
        a(f"s_mul_i32 {sT0}, {sIDX}, 112")
        a(f"s_mul_i32 {sT1}, {sLW}, 28")
        a(f"s_add_u32 {sT0}, {sT0}, {sT1}")
        a("v_mul_u32_u24 v31, 7, v22")
        a(f"v_add_u32 v31, {sT0}, v31")
        a("v_lshlrev_b32 v31, 11, v31")
        a(f"s_lshl_b32 {sT0}, {sXCD}, 8")
        a(f"v_lshl_add_u32 v24, v23, 4, {sT0}")
        a("v_add_u32 v31, v31, v24")
        a("v_lshlrev_b32 v24, 1, v22")
        a("v_xor_b32 v24, v24, v21")
        a(f"s_lshl_b32 {sT0}, {sLW}, 3")
        a(f"v_add_u32 v12, {sT0}, v20")
        a("v_lshlrev_b32 v12, 11, v12")
        a(f"s_lshl_b32 {sT0}, {sCB}, 7")
        a(f"v_lshl_add_u32 v24, v24, 4, {sT0}")
        a("v_add_u32 v12, v12, v24")
        a(f"s_lshl_b32 {sT3}, {sLW}, 10")
        a("v_and_b32 v24, 1, v0")
        a("v_lshlrev_b32 v24, 4, v24")
        a("v_mov_b32 v25, 0x3f80")
        a("v_lshlrev_b32 v24, v24, v25")
        a("v_bfe_u32 v25, v0, 1, 2")
        for d in range(4):
            a(f"v_cmp_eq_u32 vcc, {d}, v25")
            a(f"v_cndmask_b32 v{104+d}, 0, v24, vcc")
        if not self.opt.get("s1early", 1):
            self.stage_dma(1)
        a("s_waitcnt lgkmcnt(0)")
        a(f"s_add_u32 {sTAG}, {sTAG}, 0x9e3779b9")
        a(f"v_mov_b32 v35, {sTAG}")
        a(f"v_mov_b32 v36, {L_F15}")
        a("v_lshl_add_u32 v24, v21, 2, v36")
        a("v_mov_b32 v25, 0")
        a("ds_write_b32 v24, v25")
        a("s_waitcnt lgkmcnt(0)")
        if self.opt.get("fine"):
            self.stamp(41)
        self.vwait("S0")
        a("s_barrier")
        self.stamp(1)

        self.moe = [(164 + 4 * s, 30, GU, s * 7168) for s in range(16)] + [(228 + 4 * s, 31, DN, s * 2048) for s in range(7)]
        self.t_cw = self.opt.get("tcw", 8)
        T_PUB = self.opt.get("tpub", 9)
        T_GAT = self.opt.get("tgat", 12)
        assert T_PUB > self.t_cw and T_PUB >= 9
        moe_at = self.opt.get("moe", 5)

        def tagged(r0):
            for r in range(4):
                a(f"s_mov_b32 {sT0}, {0x07060500 + r}")
                a(f"v_perm_b32 v{r0+r}, v{r0+r}, v35, {sT0}")

        def gat():
            for i in range(4):
                a(f"s_mov_b32 {sT4}, {i*4*768}")
                a(f"buffer_load_dwordx4 v[{40+4*i}:{43+4*i}], v32, {WS}, {sT4} offen sc1")
            for i in range(4):
                a(f"buffer_load_dwordx4 v[{56+4*i}:{59+4*i}], v33, {WS}, {['0', s4K, s8K, s12K][i]} offen sc1")
        for t in range(15):
            if t + 2 < 16:
                self.stage_dma(t + 2)
            pft = self.opt.get("pft", 3)
            if t in (0, pft, 2 * pft):
                pfw(1 + t // pft)
            if t == self.opt.get("pfo", 5) and pf & 2:
                a(f"buffer_load_dword v39, v38, {WO}, 0 offen")
                self.vm.append("PF")
            if t == T_GAT:
                gat()
                self.vm += ["GAT"] * 8
            if t == 10:
                self.wo_dma(range(30, 32))
            if t < 8:
                a(f"s_cmp_lg_u32 s65, {t}")
                a(f"s_cbranch_scc1 L_h0c{t}")
                for s_ in range(8):
                    a(f"ds_read_b128 v[{40+4*s_}:{43+4*s_}], v{28 + (s_ & 1)} offset:{s_*1024}")
                a(f"L_h0c{t}:")
                if t < 4:
                    a(f"s_cmp_lg_u32 s66, {t}")
                    a(f"s_cbranch_scc1 L_h0r{t}")
                    for i in range(4):
                        a(f"ds_read_b128 v[{72+4*i}:{75+4*i}], v{16+i}")
                    a(f"L_h0r{t}:")
                a("s_waitcnt lgkmcnt(0)")
            if t == 4:
                for k in range(8):
                    a(f"v_mov_b32 v{88+k}, 0")
                for i in range(4):
                    for k in range(4):
                        a(f"v_dot2c_f32_bf16 v{88+k}, {sONES}, v{72+4*i+k}")
                    for k in range(4):
                        a(f"v_dot2c_f32_bf16 v{92+k}, v{72+4*i+k}, v{72+4*i+k}")
            if t == 5:
                a("v_pk_add_f32 v[88:89], v[88:89], v[90:91]")
                a("v_pk_add_f32 v[92:93], v[92:93], v[94:95]")
                a("v_add_f32 v88, v88, v89")
                a("v_add_f32 v89, v92, v93")
                for k in (88, 89):
                    a(f"v_add_f32_dpp v{k}, v{k}, v{k} quad_perm:[1,0,3,2] {DPPM}")
                for k in (88, 89):
                    a(f"v_mov_b32_dpp v{k+2}, v{k} quad_perm:[2,2,2,2] {DPPM}")
                tagged(88)
            if t == 8:
                for s_ in range(8):
                    a(f"v_mfma_f32_16x16x32_bf16 v[108:111], v[104:107], v[{40+4*s_}:{43+4*s_}], " + ("0" if s_ == 0 else "v[108:111]"))
                for r in range(4):
                    a(f"v_add_f32_dpp v{108+r}, v{108+r}, v{108+r} row_ror:8 {DPPM}")
                tagged(108)
            if t == T_PUB:
                a(f"buffer_store_dwordx4 v[108:111], v34, {WS}, 0 offen sc1")
                a(f"buffer_store_dwordx4 v[88:91], v13, {WS}, 0 offen sc1")
                self.vm += ["PUB"] * 2
            if t == 13:
                self.vwait("GAT")
                a(f"s_mov_b32 {sT0}, 0x0c0c0400")
                a(f"s_mov_b32 {sT1}, 0x05040100")
                a("L_h0_chk:")
                for i in range(8):
                    a(f"v_perm_b32 v{72+i}, v{41+4*i}, v{40+4*i}, {sT0}")
                    a(f"v_perm_b32 v{80+i}, v{43+4*i}, v{42+4*i}, {sT0}")
                    a(f"v_perm_b32 v{72+i}, v{80+i}, v{72+i}, {sT1}")
                a("v_max3_u32 v80, v72, v73, v74")
                a("v_min3_u32 v81, v72, v73, v74")
                for i in (75, 77):
                    a(f"v_max3_u32 v80, v80, v{i}, v{i+1}")
                    a(f"v_min3_u32 v81, v81, v{i}, v{i+1}")
                a("v_max_u32 v80, v80, v79")
                a("v_min_u32 v81, v81, v79")
                a(f"v_cmp_ne_u32 vcc, {sTAG}, v80")
                a(f"v_cmp_ne_u32 {sM1}, {sTAG}, v81")
                a(f"s_or_b64 vcc, vcc, {sM1}")
                a("s_cbranch_vccz L_h0_ok")
                gat()
                a("s_waitcnt vmcnt(0)")
                a(f"s_sub_u32 {sSPIN}, {sSPIN}, 1")
                a("s_cbranch_scc0 L_h0_chk")
                a(f"s_mov_b32 {sSPIN}, 0")
                a("L_h0_ok:")
                for b in (40, 56):
                    for k in range(0, 4, 2):
                        a(f"v_pk_add_f32 v[{b+k}:{b+1+k}], v[{b+k}:{b+1+k}], v[{b+4+k}:{b+5+k}]")
                        a(f"v_pk_add_f32 v[{b+8+k}:{b+9+k}], v[{b+8+k}:{b+9+k}], v[{b+12+k}:{b+13+k}]")
                        a(f"v_pk_add_f32 v[{b+k}:{b+1+k}], v[{b+k}:{b+1+k}], v[{b+8+k}:{b+9+k}]")
                self.sum_rows([40, 41, 42, 43], 44)
                a(f"s_lshl_b32 {sT0}, {sLW}, 8")
                a(f"s_add_u32 {sT0}, {sT0}, {L_C}")
                a(f"v_lshl_add_u32 v24, v23, 4, {sT0}")
                a("ds_write_b128 v24, v[40:43]")
            if t == 14:
                self.sum_rows([56, 57, 58, 59], 44)
                self.ln_stats(56, 57, 44, 46, 48)
                self.ln_stats(58, 59, 45, 47, 49)
                a("v_sub_f32 v44, 0, v44")
                a("v_sub_f32 v45, 0, v45")
                a("v_mul_f32 v48, 0x3fb8aa3b, v46")
                a("v_mul_f32 v49, 0x3fb8aa3b, v47")
                a(f"s_lshl_b32 {sT0}, {sLW}, 7")
                a(f"s_add_u32 {sT0}, {sT0}, {L_MISC}")
                a(f"v_lshl_add_u32 v24, v23, 3, {sT0}")
                a("ds_write_b64 v24, v[44:45]")
                a("ds_write_b64 v24, v[46:47] offset:512")
                a("ds_write_b64 v24, v[48:49] offset:1024")
                self.wo_dma(range(10, 20))
                a("s_waitcnt lgkmcnt(0)")
            if moe_at == 1 and t >= 1:
                self.moe_ld(2)
            if moe_at == 3 and t >= 1:
                self.moe_ld(1)
            self.vwait(f"S{t+1}")
            a("s_barrier")
            if self.opt.get("fine"):
                self.stamp(24 + t)
            if t in (4, 8, 12):
                self.stamp({4: 2, 8: 3, 12: 4}[t])
        self.wo_dma(range(20, 30))
        a("L_f15:")
        a("ds_read_b128 v[24:27], v36")
        a("s_waitcnt lgkmcnt(0)")
        a("v_min3_u32 v24, v24, v25, v26")
        a("v_min_u32 v24, v24, v27")
        a("v_cmp_eq_u32 vcc, 0, v24")
        self.spin_check("L_f15")
        self.wo_dma(range(0, 10))
        if moe_at == 5:
            self.moe_ld(self.opt.get("m15", 8))
        self.stamp(5)
        if self.opt.get("stop"):
            a("s_waitcnt vmcnt(0)")
            a("s_branch L_fin")
        a(f"s_lshl_b32 {sT0}, {sHP}, 2")
        a(f"s_add_u32 {sT0}, {sT0}, {sLW}")
        a(f"s_lshl_b32 {sT0}, {sT0}, 14")
        a(f"s_add_u32 {sT0}, {sT0}, {WS_KV}")
        a(f"v_lshl_add_u32 v2, v0, 4, {sT0}")
        a(f"s_lshl_b32 {sT0}, {sHP}, 1")
        a(f"s_add_u32 {sT0}, {sT0}, {sHH}")
        a(f"s_lshl_b32 {sT0}, {sT0}, 11")
        a(f"s_add_u32 {sT0}, {sT0}, {WS_Z}")
        a(f"v_lshl_add_u32 v3, v23, 7, {sT0}")
        a("v_lshl_add_u32 v3, v22, 4, v3")
        for k in range(8):
            a(f"v_mov_b32 v{112+k}, 0")
        self.pre_b()
        a(f"s_mov_b32 {sT2}, 0")
        a(f"s_mov_b32 {sT0}, 0x00003f80")
        a(f"s_mov_b32 {sT1}, 0x3f800000")
        self.stamp(6)
        so = ["0", s4K, s8K, s12K]

        def kvld(p):
            a(f"buffer_load_dwordx4 v[{40+4*p}:{43+4*p}], v2, {WS}, {so[p>>2]} offen offset:{(p&3)*1024} sc1")

        def zld():
            a(f"buffer_load_dwordx4 v[104:107], v3, {WS}, 0 offen sc1")
            a(f"buffer_load_dwordx4 v[108:111], v3, {WS}, 0 offen offset:64 sc1")
        for p in range(16):
            kvld(p)
        zld()
        a("L_h1_round:")
        for p in range(16):
            nxt = f"L_h1_n{p}"
            bad = f"L_h1_b{p}"
            a(f"s_bitcmp1_b32 {sT2}, {p}")
            a(f"s_cbranch_scc1 {nxt}")
            a(f"s_waitcnt vmcnt({17-p})")
            a(f"v_cmp_eq_u32 vcc, -1, v{43+4*p}")
            a(f"s_cbranch_vccnz {bad}")
            for k in range(4):
                a(f"v_dot2c_f32_bf16 v{112+2*k}, {sT0}, v{40+4*p+k}")
                a(f"v_dot2c_f32_bf16 v{113+2*k}, {sT1}, v{40+4*p+k}")
            a(f"s_bitset1_b32 {sT2}, {p}")
            a(f"s_branch {nxt}")
            a(f"{bad}:")
            kvld(p)
            a(f"{nxt}:")
        a(f"s_bitcmp1_b32 {sT2}, 16")
        a("s_cbranch_scc1 L_h1_nz")
        a("s_waitcnt vmcnt(0)")
        a("v_max_u32 v4, v104, v108")
        a("v_cmp_eq_u32 vcc, -1, v4")
        a("s_cbranch_vccnz L_h1_bz")
        for sh in (8, 4, 2, 1):
            for k in range(8):
                a(f"v_add_f32_dpp v{104+k}, v{104+k}, v{104+k} row_ror:{sh} {DPPM}")
        a(f"s_bitset1_b32 {sT2}, 16")
        a("s_branch L_h1_nz")
        a("L_h1_bz:")
        zld()
        a("L_h1_nz:")
        a(f"s_cmp_eq_u32 {sT2}, 0x1ffff")
        a("s_cbranch_scc1 L_h1_done")
        a("s_waitcnt vmcnt(0)")
        a(f"s_sub_u32 {sSPIN}, {sSPIN}, 1")
        a("s_cbranch_scc0 L_h1_round")
        a(f"s_mov_b32 {sSPIN}, 0")
        a("L_h1_done:")
        a(f"s_or_b32 {sT0}, s2, {sLW}")
        a(f"s_cmp_eq_u32 {sT0}, 0")
        a(f"s_cselect_b32 {sT0}, 0, {OOB}")
        a(f"s_add_u32 {sT0}, {sT0}, {WS_EPOCH}")
        a(f"v_mov_b32 v6, {sT0}")
        a(f"v_mov_b32 v7, {sTAG}")
        a(f"buffer_store_dword v7, v6, {WS}, 0 offen sc1")
        for k in range(4):
            a(f"v_cvt_pk_bf16_f32 v{120+k}, v{112+2*k}, v{113+2*k}")
        for k in range(4):
            a(f"v_cvt_pk_bf16_f32 v{124+k}, v{104+2*k}, v{105+2*k}")
        a(f"s_mul_i32 {sT0}, {sHH}, 3072")
        a(f"s_add_u32 {sT0}, {sT0}, {L_KVF}")
        a(f"v_lshl_add_u32 v4, v0, 4, {sT0}")
        a(f"s_lshl_b32 {sT0}, {sTH}, 10")
        a(f"v_add_u32 v5, {sT0}, v4")
        a("ds_write_b128 v5, v[120:123]")
        a("ds_write_b128 v4, v[124:127] offset:2048")
        a("s_waitcnt vmcnt(0) lgkmcnt(0)")
        self.stamp(7)
        a("s_barrier")
        a("s_barrier")
        a("v_mov_b32 v11, v30")
        a("v_mov_b32 v14, v31")
        a("s_branch L_phaseB")

    def ln_stats(self, s1, s2, m, rs, t):
        a = self.a
        a(f"v_mul_f32 v{s1}, 0x3a800000, v{s1}")
        a(f"v_mul_f32 v{s2}, 0x3a800000, v{s2}")
        a(f"v_fma_f32 v{s2}, -v{s1}, v{s1}, v{s2}")
        a(f"v_max_f32 v{s2}, 0, v{s2}")
        a(f"v_cvt_pk_bf16_f32 v{t}, v{s1}, v{s2}")
        a(f"v_lshlrev_b32 v{m}, 16, v{t}")
        a(f"v_and_b32 v{t}, 0xffff0000, v{t}")
        a(f"v_add_f32 v{t}, 0x3727c5ac, v{t}")
        self.rbf(t, t)
        a(f"v_sqrt_f32 v{t}, v{t}")
        self.rbf(t, t)
        if rs is not None:
            a(f"v_rcp_f32 v{rs}, v{t}")

    def compute(self):
        a = self.a
        ACC = 128
        a("L_comp:")
        a("v_and_b32 v20, 15, v0")
        a("v_lshrrev_b32 v21, 4, v0")
        a("v_bfe_u32 v22, v0, 1, 3")
        a(f"s_lshl_b32 {sT0}, {sTH}, 13")
        a(f"v_lshl_add_u32 v20, v20, 7, {sT0}")
        for j in range(2):
            a(f"v_or_b32 v23, {4*j}, v21")
            a("v_xor_b32 v23, v23, v22")
            a(f"v_lshl_add_u32 v{2+j}, v23, 4, v20")
        a("v_bfe_u32 v22, v0, 2, 2")
        a("v_lshl_add_u32 v22, v21, 3, v22")
        a("v_lshlrev_b32 v22, 7, v22")
        a("v_bfe_u32 v23, v0, 3, 2")
        a(f"s_lshl_b32 {sT0}, {sHH}, 1")
        a(f"v_xor_b32 v23, {sT0}, v23")
        a("v_lshl_add_u32 v22, v23, 5, v22")
        a("v_and_b32 v23, 3, v0")
        a("v_lshl_add_u32 v22, v23, 3, v22")
        a(f"v_add_u32 v4, {BOFF}, v22")
        a("v_xor_b32 v5, 32, v4")
        a("s_lshl_b32 s53, s2, 2")
        a(f"s_add_u32 s53, s53, {sW}")
        a("s_mul_i32 s53, s53, 6400")
        a(f"s_add_u32 s53, s53, {WS_ARENA}")
        a("v_lshl_add_u32 v6, v0, 4, s53")
        for k in range(4):
            a(f"v_mov_b32 v{8+k}, -1")
        a("s_waitcnt lgkmcnt(0)")
        self.srds(["WS", "X", "WO", "OUT", "DBG", "GU", "DN", "WR"])
        srd(a, 12, 84, 0)
        a("s_add_u32 s14, s53, 6400")
        self.stamp(0)
        for r in range(96):
            a(f"v_mov_b32 v{ACC+r}, 0")
        a(f"s_mov_b32 {sEPS}, 0x358637bd")
        a("s_mov_b32 s55, 0x358637bd")
        FR = [40, 80]

        def reads(j, fs):
            f = FR[fs]
            o = []
            for i in range(4):
                o.append(f"ds_read_b128 v[{f+4*i}:{f+4*i+3}], v{2+j} offset:{i*2048}")
            for m in range(3):
                for nb in range(2):
                    d = f + 16 + 4 * (m * 2 + nb)
                    o.append(f"ds_read_b64_tr_b16 v[{d}:{d+1}], v{4+nb} offset:{m*8192 + j*4096}")
                    o.append(f"ds_read_b64_tr_b16 v[{d+2}:{d+3}], v{4+nb} offset:{m*8192 + j*4096 + 512}")
            return o

        def mfmas(fs, order=range(6)):
            f = FR[fs]
            o = []
            for n in order:
                for i in range(4):
                    acc = vr(ACC + (n * 4 + i) * 4, 4)
                    A = vr(f + 4 * i, 4)
                    B = vr(f + 16 + 4 * n, 4)
                    if n < 2:
                        A, B = B, A
                    o.append(f"v_mfma_f32_16x16x32_bf16 {acc}, {A}, {B}, {acc}")
            return o

        def step(fs, rd, first=(), extra=None, order=range(6)):
            a("s_waitcnt lgkmcnt(0)")
            mm = mfmas(fs, order)
            dg = self.opt.get("diag", 0)
            if dg & 4:
                rd = []
            for g, x in enumerate(mm):
                if not dg & 1:
                    a(x)
                if g == 0:
                    for y in first:
                        a(y)
                if g < len(rd):
                    a(rd[g])
                if extra and g in extra:
                    for y in extra[g]:
                        a(y)

        a("s_mov_b32 s62, 0")
        a("s_mov_b32 s63, 0")
        a("s_barrier")
        self.stamp(1)
        for x in reads(0, 0):
            a(x)
        a("L_cloop:")
        adv = {16: [f"s_add_u32 s63, s63, 1", f"s_cmp_eq_u32 s63, {NBUF}", f"s_cselect_b32 s53, {(-NBUF*STAGE) & 0xffffffff}, 0",
                    "s_cselect_b32 s63, 0, s63", f"s_add_u32 s53, s53, {STAGE}"],
               17: ["v_add_u32 v2, s53, v2"], 18: ["v_add_u32 v4, s53, v4"], 19: ["v_add_u32 v5, s53, v5"],
               20: ["v_add_u32 v3, s53, v3"]}
        cper = self.opt.get("cper", 1)
        if self.opt.get("clr", 1):
            nit = (7 + cper - 1) // cper
            assert nit <= self.t_cw
            cl = [f"s_cmp_ge_u32 s62, {nit}", "s_cbranch_scc1 L_cl_none"]
            for k in range(cper):
                cl.append(f"buffer_store_dwordx4 v[8:11], v6, {CLR}, 0 offen offset:{k*1024} sc1")
            cl += [f"v_add_u32 v6, {cper*1024}, v6", "L_cl_none:"]
            adv[21] = cl
        step(0, reads(1, 1), extra=adv)
        tail = {17: [f"s_cmp_lg_u32 s62, {self.t_cw}", "s_cbranch_scc1 L_cl_nw", "s_waitcnt vmcnt(0)", "L_cl_nw:"],
                20: ["s_add_u32 s62, s62, 1"], 23: ["s_cmp_lt_u32 s62, 15", "s_cbranch_scc1 L_cloop"]}
        step(1, reads(0, 0), first=["s_barrier"], extra=tail)
        NM, RS, RSL, CK, CQ, QS = 40, 56, 224, 72, 28, 240
        pre = {16: ["v_lshrrev_b32 v21, 4, v0", "v_and_b32 v22, 15, v0"],
               17: [f"s_lshl_b32 {sT0}, {sTH}, 8", f"s_add_u32 {sT0}, {sT0}, {L_MISC}", f"v_lshl_add_u32 v6, v21, 4, {sT0}"],
               18: [f"v_lshl_add_u32 v7, v22, 2, {sT0}"],
               19: [f"s_lshl_b32 {sT0}, {sHH}, 7", f"s_add_u32 {sT0}, {sT0}, {L_C}", f"v_lshl_add_u32 v8, v22, 2, {sT0}"],
               20: [f"v_lshl_add_u32 v9, v21, 4, {sT0}"],
               21: [f"s_lshl_b32 {sT0}, {sW}, 2", f"s_add_u32 {sT0}, {sT0}, {L_F15}", f"v_mov_b32 v12, {sT0}"],
               22: ["v_xor_b32 v13, 4, v12"]}
        step(0, reads(1, 1), extra=pre)
        rd = []
        for i in range(4):
            rd.append(f"ds_read_b128 v[{NM+4*i}:{NM+4*i+3}], v6 offset:{i*64}")
        for n in range(4):
            rd.append(f"ds_read_b32 v{CK+n}, v8 offset:{256*(1+(n>>1)) + 64*(n&1)}")
        for i in range(4):
            rd.append(f"ds_read_b128 v[{RS+4*i}:{RS+4*i+3}], v6 offset:{512 + i*64}")
        for i in range(4):
            rd.append(f"ds_read_b128 v[{RSL+4*i}:{RSL+4*i+3}], v6 offset:{1024 + i*64}")
        for n in range(2):
            rd.append(f"ds_read_b128 v[{CQ+4*n}:{CQ+4*n+3}], v9 offset:{64*n}")
        step(1, rd, first=["ds_write_b32 v12, v12"], order=(2, 3, 4, 5, 0, 1))
        for i in range(4):
            for k in range(3):
                a(f"ds_read_b32 v{QS+4*k+i}, v7 offset:{512*k + 64*i}")
        self.stamp(5)
        if self.opt.get("stop"):
            a("s_waitcnt vmcnt(0) lgkmcnt(0)")
            a("s_branch L_fin")
        a("s_waitcnt lgkmcnt(12)")
        PK, PV, T = 80, 96, 112

        def phi(acc, dst, u_op, rs_op, rsl_op, tmp):
            a(f"v_pk_fma_f32 v[{acc}:{acc+1}], {u_op}")
            a(f"v_pk_mul_f32 v[{tmp}:{tmp+1}], v[{acc}:{acc+1}], {rsl_op}")
            a(f"v_pk_fma_f32 v[{acc}:{acc+1}], v[{acc}:{acc+1}], {rs_op}")
            a(f"v_exp_f32 v{tmp}, v{tmp} clamp")
            a(f"v_exp_f32 v{tmp+1}, v{tmp+1} clamp")
            a(f"v_max_f32 v{acc}, {sEPS}, v{acc}")
            a(f"v_max_f32 v{acc+1}, {sEPS}, v{acc+1}")
            a(f"v_pk_add_f32 v[{acc}:{acc+1}], v[{acc}:{acc+1}], v[{tmp}:{tmp+1}]")
            a(f"v_cvt_pk_bf16_f32 v{dst}, v{acc}, v{acc+1}")

        def csel(n):
            return "op_sel:[0,1,0] op_sel_hi:[1,1,1]" if n & 1 else "op_sel_hi:[1,0,1]"

        k = 0
        for n in (2, 3):
            for i in range(4):
                for h in range(2):
                    acc = ACC + (n * 4 + i) * 4 + 2 * h
                    s = 4 * i + 2 * h
                    phi(acc, PK + (n - 2) * 8 + 2 * i + h,
                        f"v[{NM+s}:{NM+s+1}], v[{CK}:{CK+1}], v[{acc}:{acc+1}] {csel(n)}",
                        f"v[{RS+s}:{RS+s+1}], s[54:55]", f"v[{RSL+s}:{RSL+s+1}]", T + 2 * (k & 3))
                    k += 1
        for r in range(4):
            a(f"v_mov_b32 v{120+r}, {sONES}")
        for n in (4, 5):
            for i in range(4):
                for h in range(2):
                    acc = ACC + (n * 4 + i) * 4 + 2 * h
                    s = 4 * i + 2 * h
                    a(f"v_pk_fma_f32 v[{acc}:{acc+1}], v[{NM+s}:{NM+s+1}], v[{CK+2}:{CK+3}], v[{acc}:{acc+1}] {csel(n)}")
                    a(f"v_pk_mul_f32 v[{acc}:{acc+1}], v[{acc}:{acc+1}], v[{RS+s}:{RS+s+1}]")
                    a(f"v_cvt_pk_bf16_f32 v{PV + (n-4)*8 + 2*i + h}, v{acc}, v{acc+1}")
        KEEP, SEND = 160, 172

        def kvm(th):
            for p in range(2):
                for dst, b in ((SEND, 1 - th), (KEEP, th)):
                    for aa in range(2):
                        d = vr(dst + 4 * aa, 4)
                        a(f"v_mfma_f32_16x16x32_bf16 {d}, {vr(PK+aa*8+4*p,4)}, {vr(PV+b*8+4*p,4)}, {'0' if p == 0 else d}")
                    d = vr(dst + 8, 4)
                    a(f"v_mfma_f32_16x16x32_bf16 {d}, {vr(PK+b*8+4*p,4)}, v[120:123], {'0' if p == 0 else d}")
        a(f"s_mul_i32 {sT0}, {sW}, 3072")
        a(f"s_add_u32 {sT0}, {sT0}, {L_XKV}")
        a(f"v_lshl_add_u32 v6, v0, 4, {sT0}")
        a(f"s_xor_b32 {sT0}, {sW}, 1")
        a(f"s_mul_i32 {sT0}, {sT0}, 3072")
        a(f"s_add_u32 {sT0}, {sT0}, {L_XKV}")
        a(f"v_lshl_add_u32 v7, v0, 4, {sT0}")
        a(f"s_cmp_eq_u32 {sTH}, 1")
        a("s_cbranch_scc1 L_kv1")
        kvm(0)
        a("s_branch L_kvd")
        a("L_kv1:")
        kvm(1)
        a("L_kvd:")
        a(f"s_lshl_b32 {sT0}, {sHP}, 1")
        a(f"s_add_u32 {sT0}, {sT0}, {sHH}")
        a(f"s_lshl_b32 {sT1}, {sT0}, 1")
        a(f"s_add_u32 {sT1}, {sT1}, {sTH}")
        a(f"s_lshl_b32 {sT1}, {sT1}, 4")
        a(f"s_add_u32 {sT1}, {sT1}, {sRB}")
        a(f"s_lshl_b32 {sT1}, {sT1}, 10")
        a(f"s_add_u32 {sT1}, {sT1}, {WS_KV}")
        a(f"v_lshl_add_u32 v8, v0, 4, {sT1}")
        a(f"s_lshl_b32 {sT1}, {sT0}, 4")
        a(f"s_add_u32 {sT1}, {sT1}, {sRB}")
        a(f"s_lshl_b32 {sT1}, {sT1}, 7")
        a(f"s_lshl_b32 {sT2}, {sTH}, 6")
        a(f"s_add_u32 {sT1}, {sT1}, {sT2}")
        a(f"s_add_u32 {sT1}, {sT1}, {WS_Z}")
        a(f"v_lshl_add_u32 v9, v21, 4, {sT1}")
        a("v_cmp_eq_u32 vcc, 0, v22")
        a(f"v_mov_b32 v10, {OOB}")
        a("v_cndmask_b32 v9, v10, v9, vcc")
        for k in range(3):
            a(f"ds_write_b128 v6, v[{SEND+4*k}:{SEND+4*k+3}] offset:{k*1024}")
        a("ds_write_b32 v12, v12 offset:16")
        a(f"s_lshl_b32 {sT1}, {sRB}, 3")
        a(f"s_lshl_b32 {sT2}, {sTH}, 2")
        a(f"s_add_u32 {sT1}, {sT1}, {sT2}")
        a(f"s_lshl_b32 {sT1}, {sT1}, 5")
        a(f"s_add_u32 {sT1}, {sT1}, {sT0}")
        a(f"s_lshl_b32 {sT1}, {sT1}, 10")
        a(f"s_add_u32 {sT1}, {sT1}, {WS_O}")
        a(f"v_lshl_add_u32 v10, v0, 4, {sT1}")
        a(f"s_mul_i32 {sT1}, {sHH}, 3072")
        a(f"s_add_u32 {sT1}, {sT1}, {L_KVF}")
        a(f"v_lshl_add_u32 v11, v0, 4, {sT1}")
        a("L_xkv:")
        a("ds_read_b32 v14, v13 offset:16")
        for k in range(3):
            a(f"ds_read_b128 v[{SEND+4*k}:{SEND+4*k+3}], v7 offset:{k*1024}")
        a("s_waitcnt lgkmcnt(0)")
        a("v_cmp_eq_u32 vcc, 0, v14")
        self.spin_check("L_xkv")
        for k in range(0, 12, 2):
            a(f"v_pk_add_f32 v[{KEEP+k}:{KEEP+k+1}], v[{KEEP+k}:{KEEP+k+1}], v[{SEND+k}:{SEND+k+1}]")
        for k in range(4):
            a(f"v_cvt_pk_bf16_f32 v{184+k}, v{KEEP+2*k}, v{KEEP+2*k+1}")
        a(f"buffer_store_dwordx4 v[184:187], v8, {WS}, 0 offen sc1")
        a(f"buffer_store_dwordx4 v[{KEEP+8}:{KEEP+11}], v9, {WS}, 0 offen sc1")
        self.stamp(6)
        PQ = 192
        k = 0
        for i in range(4):
            sel = "op_sel:[0,1,0] op_sel_hi:[1,1,1]" if i & 1 else "op_sel_hi:[1,0,1]"
            sel2 = "op_sel:[0,1] op_sel_hi:[1,1]" if i & 1 else "op_sel_hi:[1,0]"
            b = i & 2
            for n in range(2):
                for h in range(2):
                    acc = ACC + (n * 4 + i) * 4 + 2 * h
                    c = CQ + 4 * n + 2 * h
                    phi(acc, PQ + 4 * i + 2 * n + h,
                        f"v[{c}:{c+1}], v[{QS+b}:{QS+b+1}], v[{acc}:{acc+1}] {sel}",
                        f"v[{QS+4+b}:{QS+5+b}], s[54:55] {sel}", f"v[{QS+8+b}:{QS+9+b}] {sel2}", T + 2 * (k & 3))
                    k += 1
        self.pre_b()
        self.stamp(7)
        a("s_barrier")
        for k in range(3):
            a(f"ds_read_b128 v[{40+4*k}:{43+4*k}], v11 offset:{k*1024}")
        a(f"s_mov_b32 {sT0}, 0x8000")
        a(f"s_mov_b32 {sT1}, 0x10000")
        a(f"s_mov_b32 {sT2}, 0x18000")
        a("s_waitcnt lgkmcnt(0)")
        a("s_barrier")
        O = 208
        for i in range(4):
            for k in (2, 0, 1):
                a(f"v_mfma_f32_16x16x32_bf16 {vr(O+12*i+4*k,4)}, {vr(40+4*k,4)}, {vr(PQ+4*i,4)}, 0")
        for i in range(4):
            o = O + 12 * i
            a(f"v_add_f32 v{o+8}, {sEPS}, v{o+8}")
            a(f"v_rcp_f32 v{o+8}, v{o+8}")
            for k in range(0, 8, 2):
                a(f"v_pk_mul_f32 v[{o+k}:{o+k+1}], v[{o+k}:{o+k+1}], v[{o+8}:{o+9}] op_sel_hi:[1,0]")
            for k in range(4):
                a(f"v_cvt_pk_bf16_f32 v{60+4*i+k}, v{o+2*k}, v{o+2*k+1}")
            a(f"buffer_store_dwordx4 v[{60+4*i}:{63+4*i}], v10, {WS}, {['0', sT0, sT1, sT2][i]} offen sc1")
        self.stamp(8)
        if self.moe:
            a(f"v_mov_b32 v14, {OOB}")
            a(f"v_mov_b32 v11, {OOB}")

    PB = dict(OF=16, ACC=80, WF=112, WA=144, SA=148, CHK=156, XR=128)

    def pre_b(self):
        a = self.a
        WA, SA, XR, WT = 144, 148, 128, 136
        sT, sKH = "s53", "s62"
        g, tok, t0, t1 = 36, 37, 38, 39
        a(f"s_lshr_b32 {sKH}, {sW}, 2")
        a(f"s_lshl_b32 {sT}, {sRBB}, 3")
        a(f"s_lshl_b32 {sT0}, {sLW}, 1")
        a(f"s_add_u32 {sT}, {sT}, {sT0}")
        a(f"s_add_u32 {sT}, {sT}, {sKH}")
        a(f"v_lshrrev_b32 v{g}, 4, v0")
        a(f"v_and_b32 v{tok}, 15, v0")
        a(f"v_lshlrev_b32 v{t0}, 4, v0")
        a(f"buffer_load_dwordx4 v[{WT}:{WT+3}], v{t0}, {WR}, 0 offen")
        a(f"buffer_load_dwordx4 v[{WT+4}:{WT+7}], v{t0}, {WR}, 0 offen offset:1024")
        a(f"s_lshl_b32 {sT0}, {sCB}, 7")
        a(f"v_lshl_add_u32 v{t1}, v{g}, 3, {sT0}")
        for ct in range(4):
            a(f"buffer_load_dwordx2 v[{SA+2*ct}:{SA+2*ct+1}], v{t1}, {WR}, 0 offen offset:{ct*32}")
        a(f"s_lshl_b32 {sT1}, {sT}, 15")
        a(f"v_lshl_add_u32 v{t0}, v{tok}, 11, {sT1}")
        a(f"v_add_u32 v{t0}, v{t0}, v{t1}")
        for ct in range(4):
            a(f"buffer_load_dwordx2 v[{XR+2*ct}:{XR+2*ct+1}], v{t0}, {X}, 0 offen offset:{ct*32}")
        a(f"s_lshl_b32 {sT0}, {sKH}, 14")
        a(f"s_add_u32 {sT0}, {sT0}, {sT1}")
        a(f"s_add_u32 {sT0}, {sT0}, {WS_O}")
        a(f"v_lshl_add_u32 v157, v0, 4, {sT0}")
        a("v_xor_b32 v158, 0x8000, v157")
        a(f"s_and_b32 {sT0}, {sT0}, 0xffff7fff")
        a(f"s_add_u32 {sT0}, {sT0}, 1020")
        a(f"v_lshl_add_u32 v159, v{tok}, 10, {sT0}")
        a(f"v_and_b32 v{t1}, 1, v{g}")
        a(f"v_lshl_add_u32 v159, v{t1}, 15, v159")
        a(f"v_bfe_u32 v{t0}, v0, 2, 2")
        a(f"v_lshl_add_u32 v{t0}, v{g}, 2, v{t0}")
        a(f"v_bfe_u32 v{t1}, v{t0}, 1, 2")
        a(f"v_lshlrev_b32 v{t0}, 7, v{t0}")
        a(f"v_lshl_add_u32 v{t0}, v{t1}, 5, v{t0}")
        a(f"v_and_b32 v{t1}, 3, v0")
        a(f"v_lshl_add_u32 v{t0}, v{t1}, 3, v{t0}")
        a(f"s_lshl_b32 {sT0}, {sKH}, 16")
        a(f"s_add_u32 {sT0}, {sT0}, {L_WO}")
        a(f"v_add_u32 v{WA}, {sT0}, v{t0}")
        for ct in range(1, 4):
            a(f"v_xor_b32 v{WA+ct}, {ct*32}, v{WA}")
        a(f"v_cmp_eq_u32 {sM1}, 1, v{t1}")
        a(f"v_cmp_eq_u32 {sM2}, 2, v{t1}")
        a(f"v_cmp_eq_u32 {sM3}, 3, v{t1}")
        a(f"s_lshl_b32 {sT0}, {sT}, 12")
        a(f"s_add_u32 {sT0}, {sT0}, {WS_S2}")
        a(f"v_lshl_add_u32 v160, v0, 4, {sT0}")
        a(f"s_lshl_b32 {sT1}, {sCB}, 8")
        a(f"s_add_u32 {sT0}, {sT0}, {sT1}")
        a(f"v_lshl_add_u32 v161, v{tok}, 4, {sT0}")
        a(f"v_lshrrev_b32 v{t0}, 2, v{tok}")
        a(f"v_cmp_eq_u32 vcc, v{t0}, v{g}")
        a(f"v_mov_b32 v{t0}, {OOB}")
        a(f"v_cndmask_b32 v161, v{t0}, v161, vcc")
        a(f"s_lshl_b32 {sT0}, {sW}, 12")
        a(f"s_add_u32 {sT0}, {sT0}, {L_MISC}")
        a(f"v_lshl_add_u32 v162, v0, 4, {sT0}")
        a("v_xor_b32 v163, 0x4000, v162")
        a(f"v_cmp_eq_u32 vcc, 0, v{t1}")
        a(f"v_mov_b32 v{t1}, {sONES}")
        a(f"v_cndmask_b32 v{t1}, 0, v{t1}, vcc")
        a(f"v_mov_b32 v{t0}, 0")
        a("s_waitcnt vmcnt(4)")
        for k in range(8):
            a(f"v_dot2c_f32_bf16 v{t0}, {sONES}, v{WT+k}")
        for k in range(8):
            a(f"v_cndmask_b32 v{SA+k}, v{t1}, v{SA+k}, {sM1}")
        for sh in (8, 4, 2, 1):
            a(f"v_add_f32_dpp v{t0}, v{t0}, v{t0} row_ror:{sh} {DPPM}")
        self.sum_rows([t0], t1)
        a(f"v_readfirstlane_b32 {sW1}, v{t0}")

    def phase_b(self):
        a = self.a
        OF, ACC, WF, WA, SA, CHK, XR = 16, 80, 112, 144, 148, 156, 128
        sT, sKH = "s53", "s62"
        a("L_phaseB:")
        self.stamp(9)
        a(f"buffer_load_dword v8, v159, {WS}, 0 offen sc1")
        a("v_lshrrev_b32 v1, 4, v0")
        a("v_and_b32 v2, 15, v0")
        a(f"s_lshl_b32 {sT1}, {sT}, 4")
        a(f"v_add_u32 v6, {sT1}, v2")
        a(f"s_lshl_b32 {sT0}, {sCB}, 7")
        a(f"v_lshl_add_u32 v5, v6, 11, {sT0}")
        a("v_sub_u32 v6, 2047, v6")
        a("v_lshl_add_u32 v7, v1, 3, v5")
        a("v_lshrrev_b32 v9, 1, v1")
        a("v_lshl_add_u32 v5, v9, 4, v5")
        a("v_and_b32 v9, 1, v1")
        a("v_lshl_add_u32 v5, v9, 5, v5")
        a("L_b_init:")
        for k in range(8):
            a(f"v_lshlrev_b32 v{ACC+2*k}, 16, v{XR+k}")
            a(f"v_and_b32 v{ACC+2*k+1}, 0xffff0000, v{XR+k}")
        for k in range(16):
            a(f"v_mov_b32 v{ACC+16+k}, 0")
        a(f"v_mov_b32 v{CHK}, 0")
        a("s_branch L_b_chk")
        a("L_b_restart:")
        for ct in range(4):
            a(f"buffer_load_dwordx2 v[{XR+2*ct}:{XR+2*ct+1}], v7, {X}, 0 offen offset:{ct*32}")
        a("v_mov_b32 v8, -1")
        a("s_waitcnt vmcnt(0)")
        a("s_branch L_b_init")
        a("L_b_poll:")
        a(f"buffer_load_dword v8, v159, {WS}, 0 offen sc1")
        a("L_b_chk:")
        a("s_waitcnt vmcnt(0)")
        a("v_cmp_eq_u32 vcc, -1, v8")
        self.spin_check("L_b_poll")
        self.stamp(10)
        so = ["0", s4K, s8K, s12K]

        def old(h):
            return [f"buffer_load_dwordx4 v[{OF+8*(h&7)+4*tt}:{OF+8*(h&7)+4*tt+3}], v{157+tt}, {WS}, {so[h>>2]} offen offset:{(h&3)*1024} sc1"
                    for tt in range(2)]

        def wrd(h):
            f = WF + 16 * (h & 1)
            off = h * 4096
            o = []
            for ct in range(4):
                o.append(f"ds_read_b64_tr_b16 v[{f+4*ct}:{f+4*ct+1}], v{WA+ct} offset:{off}")
                o.append(f"ds_read_b64_tr_b16 v[{f+4*ct+2}:{f+4*ct+3}], v{WA+ct} offset:{off+2048}")
            return o
        for h in range(8):
            for x in old(h):
                a(x)
        for x in wrd(0):
            a(x)
        m4 = self.opt.get("moe", 5) in (4, 5)
        ngu = len(self.moe) - 7
        slots = [(h, g) for g in (1, 5) for h in range(8, 16)][:ngu]
        if m4:
            self.moe = [(d, {30: 11, 31: 14}[v], r, o) for d, v, r, o in self.moe]
        for h in range(16):
            nout = 14 if h <= 8 else 2 * (15 - h)
            if m4:
                nout += sum(1 for hh, g in slots if hh < h)
            a(f"s_waitcnt vmcnt({nout}) lgkmcnt(0)")
            s = OF + 8 * (h & 7)
            a(f"v_max3_u32 v{CHK}, v{CHK}, v{s+3}, v{s+7}")
            if h == 15:
                a(f"v_cmp_eq_u32 vcc, -1, v{CHK}")
                self.spin_check("L_b_restart")
                if self.moe and not m4:
                    a(f"s_cmp_eq_u32 {sKH}, 0")
                    a("s_cbranch_scc1 L_b_nomoe")
                    self.moe = [(d, {30: 11, 31: 14}[v], r, o) for d, v, r, o in self.moe]
                    self.moe_ld(23)
                    a("L_b_nomoe:")
            rd = wrd(h + 1) if h < 15 else []
            g = 0
            for ct in range(4):
                for tt in range(2):
                    d = vr(ACC + 16 * tt + 4 * ct, 4)
                    a(f"v_mfma_f32_16x16x32_bf16 {d}, {vr(WF+16*(h&1)+4*ct,4)}, {vr(s+4*tt,4)}, {d}")
                    if rd:
                        a(rd[g])
                    if m4 and (h, g) in slots:
                        self.moe_ld(1)
                    g += 1
            if h < 8:
                for x in old(h + 8):
                    a(x)
        for ct in range(4):
            a(f"ds_write_b128 v162, v[{ACC+16+4*ct}:{ACC+19+4*ct}] offset:{ct*1024}")
        a("s_waitcnt lgkmcnt(0)")
        self.stamp(11)
        a("s_barrier")
        H, HF, HN = 32, 40, 96
        for ct in range(4):
            a(f"ds_read_b128 v[{16+4*ct}:{19+4*ct}], v163 offset:{ct*1024}")
        for ct in range(4):
            a(f"s_waitcnt lgkmcnt({3-ct})")
            for k in range(2):
                r = 4 * ct + 2 * k
                a(f"v_pk_add_f32 v[{ACC+r}:{ACC+r+1}], v[{ACC+r}:{ACC+r+1}], v[{16+r}:{17+r}]")
            for k in range(2):
                r = 4 * ct + 2 * k
                a(f"v_cvt_pk_bf16_f32 v{H+2*ct+k}, v{ACC+r}, v{ACC+r+1}")
        ST, GR = 56, 60
        a(f"v_mfma_f32_16x16x32_bf16 v[{GR}:{GR+3}], v[{H}:{H+3}], v[{H}:{H+3}], 0")
        a(f"v_mfma_f32_16x16x32_bf16 v[{ST}:{ST+3}], v[{SA}:{SA+3}], v[{H}:{H+3}], 0")
        a(f"v_mfma_f32_16x16x32_bf16 v[{GR}:{GR+3}], v[{H+4}:{H+7}], v[{H+4}:{H+7}], v[{GR}:{GR+3}]")
        a(f"v_mfma_f32_16x16x32_bf16 v[{ST}:{ST+3}], v[{SA+4}:{SA+7}], v[{H+4}:{H+7}], v[{ST}:{ST+3}]")
        for k in range(4):
            a(f"v_lshlrev_b32 v{HF+2*k}, 16, v{H+k}")
            a(f"v_and_b32 v{HF+2*k+1}, 0xffff0000, v{H+k}")
        a(f"v_cndmask_b32 v{GR}, v{GR}, v{GR+1}, {sM1}")
        a(f"v_cndmask_b32 v{GR}, v{GR}, v{GR+2}, {sM2}")
        a(f"v_cndmask_b32 v{ST+2}, v{GR}, v{GR+3}, {sM3}")
        a(f"buffer_store_dwordx4 v[{ST}:{ST+3}], v161, {WS}, 0 offen sc1")
        self.stamp(12)
        for k in range(4, 8):
            a(f"v_lshlrev_b32 v{HF+2*k}, 16, v{H+k}")
            a(f"v_and_b32 v{HF+2*k+1}, 0xffff0000, v{H+k}")
        R = 64
        a("L_h3:")
        for i in range(4):
            a(f"buffer_load_dwordx4 v[{R+4*i}:{R+4*i+3}], v160, {WS}, 0 offen offset:{i*1024} sc1")
        a("s_waitcnt vmcnt(0)")
        a(f"v_max3_u32 v8, v{R+2}, v{R+6}, v{R+10}")
        a(f"v_max_u32 v8, v8, v{R+14}")
        a("v_cmp_eq_u32 vcc, -1, v8")
        self.spin_check("L_h3")
        self.stamp(13)
        a(f"v_pk_add_f32 v[{R}:{R+1}], v[{R}:{R+1}], v[{R+4}:{R+5}]")
        a(f"v_add_f32 v{R+2}, v{R+2}, v{R+6}")
        a(f"v_pk_add_f32 v[{R+8}:{R+9}], v[{R+8}:{R+9}], v[{R+12}:{R+13}]")
        a(f"v_add_f32 v{R+10}, v{R+10}, v{R+14}")
        a(f"v_pk_add_f32 v[{R}:{R+1}], v[{R}:{R+1}], v[{R+8}:{R+9}]")
        a(f"v_add_f32 v{R+2}, v{R+2}, v{R+10}")
        self.sum_rows([R, R + 1, R + 2], R + 4)
        M_, RS_, RV, KEY, NMR = R + 4, R + 6, 12, 13, R + 8
        self.ln_stats(R, R + 2, M_, RS_, R + 5)
        a(f"v_fma_f32 v{RV}, -v{M_}, {sW1}, v{R+1}")
        a(f"v_mul_f32 v{RV}, v{RV}, v{RS_}")
        a(f"v_mul_f32 v{NMR}, -v{M_}, v{RS_}")
        a(f"v_ashrrev_i32 v8, 31, v{RV}")
        a("v_or_b32 v8, 0x80000000, v8")
        a(f"v_xor_b32 v8, v8, v{RV}")
        a("v_and_b32 v8, 0xfffff800, v8")
        a(f"v_or_b32 v{KEY}, v8, v6")
        a(f"s_lshl_b32 {sT0}, {sW}, 6")
        a(f"s_add_u32 {sT0}, {sT0}, {L_KEYS}")
        a(f"v_lshl_add_u32 v8, v2, 2, {sT0}")
        a(f"ds_write_b32 v8, v{KEY}")
        for k in range(8):
            a(f"v_pk_fma_f32 v[{16+2*k}:{17+2*k}], v[{HF+2*k}:{HF+2*k+1}], v[{RS_}:{RS_+1}], v[{NMR}:{NMR+1}] op_sel_hi:[1,0,0]")
        a("v_lshlrev_b32 v8, 3, v0")
        a(f"v_add_u32 v8, {L_KEYS}, v8")
        a("s_waitcnt lgkmcnt(0)")
        a("s_barrier")
        a(f"ds_read_b64 v[{R}:{R+1}], v8")
        for k in range(8):
            a(f"v_cvt_pk_bf16_f32 v{HN+k}, v{16+2*k}, v{17+2*k}")
        a("s_waitcnt lgkmcnt(0)")
        a(f"v_max_u32 v{R+2}, v{R}, v{R+1}")
        a(f"v_min_u32 v{R+3}, v{R}, v{R+1}")
        self.top2(R + 2, R + 3, R, R + 1, 4, sK1, sK2)
        a(f"v_cmp_eq_u32 s[4:5], {sK1}, v{KEY}")
        a(f"v_cmp_eq_u32 s[6:7], {sK2}, v{KEY}")
        a(f"s_or_b64 {sCAND}, s[4:5], s[6:7]")
        a("s_cbranch_scc0 L_nocand")
        a(f"s_lshl_b32 {sT0}, {sRBB}, 12")
        a(f"s_lshl_b32 {sT1}, {sCB}, 7")
        a(f"s_add_u32 {sT0}, {sT0}, {sT1}")
        a(f"s_add_u32 {sT0}, {sT0}, {WS_CAND}")
        a(f"v_lshl_add_u32 v8, v1, 3, {sT0}")
        a("v_add_u32 v9, 2048, v8")
        a("v_cndmask_b32 v8, v8, v9, s[6:7]")
        a(f"v_mov_b32 v9, {OOB}")
        a(f"v_cndmask_b32 v8, v9, v8, {sCAND}")
        for ct in range(4):
            a(f"buffer_store_dwordx2 v[{HN+2*ct}:{HN+2*ct+1}], v8, {WS}, 0 offen offset:{ct*32} sc1")
        a("L_nocand:")
        a(f"s_cmp_lg_u32 {sW}, 0")
        a("s_cbranch_scc1 L_nokey")
        a(f"s_lshl_b32 {sT0}, {sCB}, 7")
        a(f"s_lshl_b32 {sT1}, {sRBB}, 3")
        a(f"s_add_u32 {sT0}, {sT0}, {sT1}")
        a(f"s_add_u32 {sT0}, {sT0}, {WS_KEY}")
        a(f"v_mov_b32 v8, {sT0}")
        a(f"v_mov_b32 v9, {OOB}")
        a("v_cmp_eq_u32 vcc, 0, v0")
        a("v_cndmask_b32 v8, v9, v8, vcc")
        a(f"v_mov_b32 v10, {sK1}")
        a(f"v_mov_b32 v11, {sK2}")
        a(f"buffer_store_dwordx2 v[10:11], v8, {WS}, 0 offen sc1")
        a("L_nokey:")
        self.stamp(14)
        SEG, VK = 112, 128
        a(f"s_bfe_u32 {sT0}, s2, 0x20001")
        a(f"s_lshl_b32 {sT0}, {sT0}, 2")
        a(f"s_add_u32 {sT0}, {sT0}, {sLW}")
        a(f"s_lshl_b32 {sT0}, {sT0}, 7")
        a(f"s_add_u32 {sT1}, {sT0}, {WS_KEY}")
        a("v_and_b32 v8, 31, v0")
        a(f"v_lshl_add_u32 v129, v8, 2, {sT1}")
        a(f"s_add_u32 {sT1}, {sT0}, {WS_CAND}")
        a("v_and_b32 v8, 7, v0")
        a(f"v_lshl_add_u32 v130, v8, 4, {sT1}")
        a("v_lshrrev_b32 v8, 3, v0")
        a("v_lshl_add_u32 v130, v8, 11, v130")
        a(f"s_mov_b32 {sT3}, 0x4000")
        a(f"s_mov_b32 {sT4}, 0x8000")
        a(f"s_mov_b32 {sT5}, 0xc000")
        a(f"s_cmp_lg_u64 {sCAND}, 0")
        a(f"s_cselect_b32 s63, 1, {sKH}")

        def h4ld():
            a(f"buffer_load_dword v{VK}, v129, {WS}, 0 offen sc1")
            for i in range(4):
                a(f"buffer_load_dwordx4 v[{SEG+4*i}:{SEG+4*i+3}], v130, {WS}, {['0', sT3, sT4, sT5][i]} offen sc1")
        a("s_cmp_eq_u32 s63, 0")
        a("s_cbranch_scc1 L_h4_skip1")
        h4ld()
        a("L_h4_skip1:")
        OP = 104
        for k in range(8):
            a(f"v_lshlrev_b32 v{16+2*k}, 16, v{HN+k}")
            a(f"v_and_b32 v{17+2*k}, 0xffff0000, v{HN+k}")
        for k in range(8):
            a(f"v_pk_add_f32 v[{16+2*k}:{17+2*k}], v[{16+2*k}:{17+2*k}], v[{HF+2*k}:{HF+2*k+1}]")
        for k in range(8):
            a(f"v_cvt_pk_bf16_f32 v{OP+k}, v{16+2*k}, v{17+2*k}")
        for b in (0, 4):
            a(f"v_permlane16_swap_b32 v{OP+b}, v{OP+b+2}")
            a(f"v_permlane16_swap_b32 v{OP+b+1}, v{OP+b+3}")
        a(f"v_mov_b32 v9, {OOB}")
        a(f"v_cndmask_b32 v8, v5, v9, {sCAND}")
        a(f"buffer_store_dwordx4 v[{OP}:{OP+3}], v8, {OUT}, 0 offen")
        a(f"buffer_store_dwordx4 v[{OP+4}:{OP+7}], v8, {OUT}, 0 offen offset:64")
        self.stamp(15)
        a("s_cmp_eq_u32 s63, 0")
        a("s_cbranch_scc1 L_fin")
        a(f"s_cmp_eq_u64 {sCAND}, 0")
        a("s_cbranch_scc1 L_nostash")
        a(f"v_lshlrev_b32 v8, 3, v1")
        a(f"v_add_u32 v8, {L_STASH}, v8")
        a("v_add_u32 v9, 512, v8")
        a("v_cndmask_b32 v8, v8, v9, s[6:7]")
        self.rbf(9, RV)
        a(f"s_mov_b64 exec, {sCAND}")
        for ct in range(4):
            a(f"ds_write_b64 v8, v[{H+2*ct}:{H+2*ct+1}] offset:{ct*32}")
            a(f"ds_write_b64 v8, v[{HN+2*ct}:{HN+2*ct+1}] offset:{128 + ct*32}")
        a("ds_write_b32 v8, v9 offset:256")
        a("s_mov_b64 exec, -1")
        a("L_nostash:")
        a("s_branch L_h4_chk")
        a("L_h4:")
        h4ld()
        a("L_h4_chk:")
        a("s_waitcnt vmcnt(0)")
        a(f"v_max3_u32 v8, v{VK}, v{SEG+1}, v{SEG+3}")
        for i in range(1, 4):
            a(f"v_max3_u32 v8, v8, v{SEG+4*i+1}, v{SEG+4*i+3}")
        a("v_cmp_eq_u32 vcc, -1, v8")
        self.spin_check("L_h4")
        self.stamp(16)
        a(f"s_lshl_b32 {sT2}, {sLW}, 12")
        a(f"s_add_u32 {sT2}, {sT2}, {L_SEG}")
        a(f"s_cmp_eq_u32 {sKH}, 0")
        a("s_cbranch_scc1 L_noseg")
        a(f"v_lshl_add_u32 v8, v0, 4, {sT2}")
        for i in range(4):
            a(f"ds_write_b128 v8, v[{SEG+4*i}:{SEG+4*i+3}] offset:{i*1024}")
        a("L_noseg:")
        a(f"v_mov_b32 v{R}, v{VK}")
        a(f"v_mov_b32 v{R+1}, 0")
        self.top2(R, R + 1, R + 2, R + 3, 2, sG1, sG2)
        a(f"s_cmp_eq_u64 {sCAND}, 0")
        a("s_cbranch_scc1 L_nolost")
        a(f"v_cmp_ne_u32 s[4:5], {sG1}, v{KEY}")
        a(f"v_cmp_ne_u32 s[6:7], {sG2}, v{KEY}")
        a("s_and_b64 s[4:5], s[4:5], s[6:7]")
        a(f"s_and_b64 s[4:5], s[4:5], {sCAND}")
        a(f"v_mov_b32 v9, {OOB}")
        a("v_cndmask_b32 v8, v9, v5, s[4:5]")
        a(f"buffer_store_dwordx4 v[{OP}:{OP+3}], v8, {OUT}, 0 offen")
        a(f"buffer_store_dwordx4 v[{OP+4}:{OP+7}], v8, {OUT}, 0 offen offset:64")
        a("L_nolost:")
        a(f"s_cmp_lg_u32 {sKH}, 0")
        a("s_cbranch_scc1 L_moe")
        a("s_barrier")
        a("s_barrier")
        a("s_branch L_final")

        a("L_moe:")
        self.moe_ld(7)
        a(f"v_cmp_eq_u32 vcc, {sG1}, v{VK}")
        a(f"s_ff1_i32_b64 {sT0}, vcc")
        a(f"v_cmp_eq_u32 vcc, {sG2}, v{VK}")
        a(f"s_ff1_i32_b64 {sT1}, vcc")
        a(f"s_lshl_b32 {sT0}, {sT0}, 7")
        a(f"s_lshl_b32 {sT1}, {sT1}, 7")
        a("v_bfe_u32 v8, v0, 3, 1")
        a("v_cmp_eq_u32 vcc, 1, v8")
        a(f"v_mov_b32 v9, {sT0}")
        a(f"v_mov_b32 v10, {sT1}")
        a("v_cndmask_b32 v9, v9, v10, vcc")
        a(f"v_lshl_add_u32 v10, v1, 5, {sT2}")
        a("v_add_u32 v9, v9, v10")
        a("s_waitcnt lgkmcnt(0)")
        XV, SEL, AF, D = 64, 72, 80, 88
        a(f"ds_read_b128 v[{XV}:{XV+3}], v9")
        a(f"ds_read_b128 v[{XV+4}:{XV+7}], v9 offset:16")
        a("v_and_b32 v10, 1, v0")
        a("v_cmp_eq_u32 vcc, 1, v10")
        a("v_mov_b32 v10, 0x0c0c0100")
        a("v_mov_b32 v11, 0x01000c0c")
        a("v_cndmask_b32 v16, v10, v11, vcc")
        a("v_mov_b32 v10, 0x0c0c0302")
        a("v_mov_b32 v11, 0x03020c0c")
        a("v_cndmask_b32 v17, v10, v11, vcc")
        a("v_bfe_u32 v10, v0, 1, 2")
        a("v_mov_b32 v11, 0x0c0c0c0c")
        for d in range(4):
            a(f"v_cmp_eq_u32 vcc, {d}, v10")
            a(f"v_cndmask_b32 v{SEL+d}, v11, v16, vcc")
            a(f"v_cndmask_b32 v{SEL+4+d}, v11, v17, vcc")

        def chain(n, wbase):
            for s in range(n):
                f = AF + 4 * (s & 1)
                for d in range(4):
                    a(f"v_perm_b32 v{f+d}, v{XV+(s>>1)}, v{XV+(s>>1)}, v{SEL+4*(s&1)+d}")
                a(f"v_mfma_f32_16x16x32_bf16 v[{D}:{D+3}], v[{f}:{f+3}], v[{wbase+4*s}:{wbase+4*s+3}], " + ("0" if s == 0 else f"v[{D}:{D+3}]"))

        def reduce_publish(lred, lab):
            a(f"ds_write_b128 v18, v[{D}:{D+3}] offset:{lred - L_RED1}")
            a("s_waitcnt lgkmcnt(0)")
            a("s_barrier")
            a(f"s_cmp_lg_u32 {sLW}, 0")
            a(f"s_cbranch_scc1 {lab}")
            for k in range(1, 4):
                a(f"ds_read_b128 v[{16+4*k}:{19+4*k}], v18 offset:{lred - L_RED1 + k*1024}")
            a("s_waitcnt lgkmcnt(0)")
            for k in range(0, 4, 2):
                a(f"v_pk_add_f32 v[{D+k}:{D+k+1}], v[{D+k}:{D+k+1}], v[{20+k}:{21+k}]")
                a(f"v_pk_add_f32 v[{24+k}:{25+k}], v[{24+k}:{25+k}], v[{28+k}:{29+k}]")
                a(f"v_pk_add_f32 v[{D+k}:{D+k+1}], v[{D+k}:{D+k+1}], v[{24+k}:{25+k}]")
            a(f"buffer_store_dwordx4 v[{D}:{D+3}], v19, {WS}, 0 offen sc1")
            a(f"{lab}:")
        a(f"s_lshl_b32 {sT0}, {sLW}, 10")
        a(f"s_add_u32 {sT0}, {sT0}, {L_RED1}")
        a(f"v_lshl_add_u32 v18, v0, 4, {sT0}")
        a(f"s_and_b32 {sT0}, s2, 1")
        a(f"s_lshl_b32 {sT0}, {sT0}, 2")
        a(f"s_bfe_u32 {sT1}, s2, 0x20001")
        a(f"s_add_u32 {sT0}, {sT0}, {sT1}")
        a(f"s_mul_i32 {sT0}, {sT0}, 28672")
        a(f"s_lshl_b32 {sT1}, {sIDX}, 9")
        a(f"s_add_u32 {sT0}, {sT0}, {sT1}")
        a(f"s_add_u32 {sT0}, {sT0}, {WS_GU}")
        a("s_cmp_ge_u32 s2, 224")
        a(f"s_cselect_b32 {sT0}, {OOB}, {sT0}")
        a(f"v_lshl_add_u32 v19, v2, 5, {sT0}")
        a("v_and_b32 v10, 1, v1")
        a("v_lshl_add_u32 v19, v10, 4, v19")
        a("v_lshrrev_b32 v11, 1, v1")
        a("v_mul_u32_u24 v16, 14336, v11")
        a("v_add_u32 v19, v19, v16")
        a("s_waitcnt lgkmcnt(0)")
        chain(16, 164)
        reduce_publish(L_RED1, "L_gu_done")
        self.stamp(17)
        a(f"s_mul_i32 {sT0}, {sIDX}, 112")
        a(f"s_mul_i32 {sT1}, {sLW}, 28")
        a(f"s_add_u32 {sT0}, {sT0}, {sT1}")
        a("v_bfe_u32 v16, v0, 3, 2")
        a("v_mul_u32_u24 v16, 7, v16")
        a("v_and_b32 v17, 7, v0")
        a("v_min_u32 v17, 6, v17")
        a(f"v_add3_u32 v16, v16, v17, {sT0}")
        a("v_lshrrev_b32 v17, 5, v0")
        a("v_mul_u32_u24 v17, 14336, v17")
        a("v_lshl_add_u32 v16, v16, 2, v17")
        a(f"v_add_u32 v16, {WS_GU}, v16")
        a(f"s_lshl_b32 {sT0}, {sIDX}, 13")
        a(f"s_lshl_b32 {sT1}, {sXCD}, 9")
        a(f"s_add_u32 {sT0}, {sT0}, {sT1}")
        a(f"s_add_u32 {sT0}, {sT0}, {WS_DP}")
        a(f"v_lshl_add_u32 v9, v2, 5, {sT0}")
        a("v_lshl_add_u32 v9, v10, 4, v9")
        a("v_lshl_add_u32 v9, v11, 12, v9")
        a(f"s_lshl_b32 {sT0}, {sLW}, 7")
        a(f"s_add_u32 {sT0}, {sT0}, {L_AD}")
        a(f"v_lshl_add_u32 v10, v0, 1, {sT0}")
        a(f"v_lshl_add_u32 v11, v8, 6, {sT0}")
        a("v_lshl_add_u32 v11, v1, 4, v11")
        GV = 24
        a("L_h5:")
        for k in range(8):
            a(f"s_mov_b32 {sT4}, {k*28672}")
            a(f"buffer_load_dword v{GV+k}, v16, {WS}, {sT4} offen sc1")
        a("s_waitcnt vmcnt(0)")
        a(f"v_max3_u32 v17, v{GV}, v{GV+1}, v{GV+2}")
        a(f"v_max3_u32 v17, v17, v{GV+3}, v{GV+4}")
        a(f"v_max3_u32 v17, v17, v{GV+5}, v{GV+6}")
        a(f"v_max_u32 v17, v17, v{GV+7}")
        a("v_cmp_eq_u32 vcc, -1, v17")
        self.spin_check("L_h5")
        self.stamp(18)
        a("v_mov_b32 v19, v9")
        a(f"v_add_f32 v{GV}, v{GV}, v{GV+1}")
        a(f"v_add_f32 v{GV+2}, v{GV+2}, v{GV+3}")
        a(f"v_add_f32 v{GV+4}, v{GV+4}, v{GV+5}")
        a(f"v_add_f32 v{GV+6}, v{GV+6}, v{GV+7}")
        a(f"v_add_f32 v{GV}, v{GV}, v{GV+2}")
        a(f"v_add_f32 v{GV+4}, v{GV+4}, v{GV+6}")
        a(f"v_cvt_pk_bf16_f32 v{GV+1}, v{GV}, v{GV+4}")
        a(f"v_lshlrev_b32 v{GV}, 16, v{GV+1}")
        a(f"v_and_b32 v{GV+4}, 0xffff0000, v{GV+1}")
        a(f"v_mul_f32 v{GV+1}, 0xbfb8aa3b, v{GV}")
        a(f"v_exp_f32 v{GV+1}, v{GV+1}")
        a(f"v_add_f32 v{GV+1}, 1.0, v{GV+1}")
        a(f"v_rcp_f32 v{GV+1}, v{GV+1}")
        a(f"v_mul_f32 v{GV}, v{GV}, v{GV+1}")
        self.rbf(GV, GV)
        a(f"v_mul_f32 v{GV}, v{GV}, v{GV+4}")
        a(f"v_cvt_pk_bf16_f32 v{GV}, v{GV}, v{GV}")
        a(f"ds_write_b16 v10, v{GV}")
        a("s_waitcnt lgkmcnt(0)")
        a(f"ds_read_b128 v[{XV}:{XV+3}], v11")
        a("s_waitcnt lgkmcnt(0)")
        chain(7, 228)
        reduce_publish(L_RED2, "L_dn_done")
        self.stamp(19)

        a("L_final:")
        a(f"s_cmp_eq_u64 {sCAND}, 0")
        a("s_cbranch_scc1 L_fin")
        a("s_mov_b32 s63, 0")
        a("L_fin_loop:")
        a(f"v_cmp_eq_u32 vcc, {sG1}, v{KEY}")
        a("s_cbranch_vccz L_fin_next")
        a(f"s_cmp_eq_u32 {sG1}, {sK1}")
        a(f"s_cselect_b32 {sT0}, 0, 512")
        a(f"s_add_u32 {sT0}, {sT0}, {L_STASH}")
        a(f"v_lshl_add_u32 v8, v2, 3, {sT0}")
        a(f"v_mov_b32 v9, {sT0}")
        a("ds_read_b64 v[56:57], v8")
        a("ds_read_b64 v[58:59], v8 offset:128")
        a("ds_read_b32 v60, v9 offset:256")
        a(f"s_lshl_b32 {sT0}, s63, 12")
        a(f"s_lshl_b32 {sT1}, {sCB}, 8")
        a(f"s_add_u32 {sT0}, {sT0}, {sT1}")
        a(f"s_add_u32 {sT0}, {sT0}, {WS_DP}")
        a(f"v_lshl_add_u32 v10, v2, 4, {sT0}")
        a("v_lshl_add_u32 v10, v1, 13, v10")
        a(f"s_and_b32 {sT0}, {sG1}, 0x7ff")
        a(f"s_sub_u32 {sT0}, 2047, {sT0}")
        a(f"s_lshl_b32 {sT0}, {sT0}, 11")
        a(f"s_lshl_b32 {sT1}, {sCB}, 7")
        a(f"s_add_u32 {sT0}, {sT0}, {sT1}")
        a(f"v_lshl_add_u32 v11, v2, 3, {sT0}")
        a("v_cmp_eq_u32 vcc, 0, v1")
        a(f"v_mov_b32 v9, {OOB}")
        a("v_cndmask_b32 v11, v9, v11, vcc")
        a("s_waitcnt lgkmcnt(0)")
        a("v_mul_f32 v60, 0xbfb8aa3b, v60")
        a("v_exp_f32 v60, v60")
        a("v_add_f32 v60, 1.0, v60")
        a("v_rcp_f32 v60, v60")
        self.rbf(60, 60)
        for k in range(2):
            a(f"v_lshlrev_b32 v{64+2*k}, 16, v{56+k}")
            a(f"v_and_b32 v{65+2*k}, 0xffff0000, v{56+k}")
            a(f"v_lshlrev_b32 v{68+2*k}, 16, v{58+k}")
            a(f"v_and_b32 v{69+2*k}, 0xffff0000, v{58+k}")
        a("L_h6:")
        for i in range(8):
            a(f"s_mov_b32 {sT4}, {i*32768}")
            a(f"buffer_load_dwordx4 v[{112+4*i}:{115+4*i}], v10, {WS}, {sT4} offen sc1")
        a("s_waitcnt vmcnt(0)")
        a("v_max3_u32 v8, v115, v119, v123")
        a("v_max3_u32 v8, v8, v127, v131")
        a("v_max3_u32 v8, v8, v135, v139")
        a("v_max_u32 v8, v8, v143")
        a("v_cmp_eq_u32 vcc, -1, v8")
        self.spin_check("L_h6")
        for st in (16, 8, 4):
            for k in range(0, st, 2):
                a(f"v_pk_add_f32 v[{112+k}:{113+k}], v[{112+k}:{113+k}], v[{112+st+k}:{113+st+k}]")
        self.sum_rows([112, 113, 114, 115], 116)

        def rnd4():
            for k in range(2):
                a(f"v_cvt_pk_bf16_f32 v{116+k}, v{112+2*k}, v{113+2*k}")
            for k in range(2):
                a(f"v_lshlrev_b32 v{112+2*k}, 16, v{116+k}")
                a(f"v_and_b32 v{113+2*k}, 0xffff0000, v{116+k}")
        rnd4()
        for k in range(0, 4, 2):
            a(f"v_pk_mul_f32 v[{112+k}:{113+k}], v[{112+k}:{113+k}], v[60:61] op_sel_hi:[1,0]")
        rnd4()
        for k in range(0, 4, 2):
            a(f"v_pk_add_f32 v[{112+k}:{113+k}], v[{112+k}:{113+k}], v[{68+k}:{69+k}]")
        rnd4()
        for k in range(0, 4, 2):
            a(f"v_pk_add_f32 v[{112+k}:{113+k}], v[{112+k}:{113+k}], v[{64+k}:{65+k}]")
        for k in range(2):
            a(f"v_cvt_pk_bf16_f32 v{116+k}, v{112+2*k}, v{113+2*k}")
        a(f"buffer_store_dwordx2 v[116:117], v11, {OUT}, 0 offen")
        a("L_fin_next:")
        a(f"s_mov_b32 {sG1}, {sG2}")
        a("s_add_u32 s63, s63, 1")
        a("s_cmp_lt_u32 s63, 2")
        a("s_cbranch_scc1 L_fin_loop")
        a("L_fin:")
        self.stamp(20)
        self.stamp_out()
        a("L_end:")
        a("s_endpgm")

    def build(self):
        self.prologue()
        self.loader()
        self.compute()
        self.phase_b()
        lines, added = hazard.process(self.a.lines)
        bad = hazard.check_edges(lines)
        if bad:
            for b in bad:
                print("EDGE HAZARD:", b, file=sys.stderr)
        body = "\n".join(lines) + "\n"
        L = NAME + "_kernel"
        return wrap([f"grid=(256,1,1) block=(512,1,1) lds={LDS_BYTES}"], body, [kd(L, 256, 102)]), added, bad


if __name__ == "__main__":
    out = f"/code/{NAME}.s"
    opt = {}
    for x in sys.argv[1:]:
        if "=" in x:
            k, v = x.split("=")
            opt[k] = int(v)
        else:
            out = x
    txt, added, bad = Gen(**opt).build()
    open(out, "w").write(txt)
    print(f"wrote {out}: {len(txt)} bytes, {added} nops added, {len(bad)} edge hazards")
```
